```python
import torch

def _softmax(x, axis=-1):
    return torch.softmax(x, dim=axis)
def _gelu(x):
    return torch.nn.functional.gelu(x, approximate="tanh")
def _silu(x):
    return torch.nn.functional.silu(x)
def _sigmoid(x):
    return torch.sigmoid(x)
def _layernorm(x, axis=-1, eps=1e-5):
    m = x.mean(dim=axis, keepdim=True)
    v = x.var(dim=axis, keepdim=True, unbiased=False)
    return (x - m) / torch.sqrt(v + eps)
def _scatter_add(tgt, idx, src, axis=0):
    return tgt.clone().index_add_(axis, idx, src)
def _segment_sum(src, seg, n):
    out = torch.zeros((n,) + src.shape[1:], dtype=src.dtype)
    return out.index_add_(0, seg, src)
def _pad(x, pw):
    flat = tuple(v for pair in reversed(pw) for v in pair)
    return torch.nn.functional.pad(x, flat)

kernel_name = 'interleave_layers__ssm_conv_s4__dense_activation_squared_relu__prompt'

def setup_inputs():

    _w = (lambda a: (lambda t: t.to(torch.bfloat16) if t.is_floating_point() else t)(torch.as_tensor(a)))
    def _A_setup():
        B, L, D, N = 1, 2048, 512, 128
        A_re = -(lambda _x: torch.exp(torch.as_tensor(_x)))((lambda *s: torch.randn(*s, dtype=torch.bfloat16) * 1.6)(D, N))
        A_im = torch.pi * (lambda *s: torch.randn(*s, dtype=torch.bfloat16) * 0.2)(D, N)
        B_re = (lambda *s: torch.randn(*s, dtype=torch.bfloat16) * 0.2)(D, N)
        B_im = (lambda *s: torch.randn(*s, dtype=torch.bfloat16) * 0.2)(D, N)
        C_re = (lambda *s: torch.randn(*s, dtype=torch.bfloat16) * 0.2)(D, N)
        C_im = (lambda *s: torch.randn(*s, dtype=torch.bfloat16) * 0.2)(D, N)
        log_dt = (lambda *s: torch.randn(*s, dtype=torch.bfloat16) * 0.2)(D) * 0.5 - 4.0
        Dskip = (lambda *s: torch.randn(*s, dtype=torch.bfloat16) * 0.2)(D)
        return {
            "u": _w((lambda *s: torch.randn(*s, dtype=torch.bfloat16) * 0.05)(B, L, D)),
            "A_re": _w(A_re),
            "A_im": _w(A_im),
            "B_re": _w(B_re),
            "B_im": _w(B_im),
            "C_re": _w(C_re),
            "C_im": _w(C_im),
            "log_dt": _w(log_dt),
            "Dskip": _w(Dskip),
        }
    _A_in = _A_setup()

    def _B_setup():
        B, S, D, F = 1, 2048, 512, 1792
        return {
            "x": _w((lambda *s: torch.randn(*s, dtype=torch.bfloat16) * 0.05)(B, S, D)),
            "w1": _w((lambda *s: torch.randn(*s, dtype=torch.bfloat16) * 0.05)(D, F)),
            "b1": _w((lambda *s: torch.randn(*s, dtype=torch.bfloat16) * 0.2)(F)),
            "w2": _w((lambda *s: torch.randn(*s, dtype=torch.bfloat16) * 0.05)(F, D)),
            "b2": _w((lambda *s: torch.randn(*s, dtype=torch.bfloat16) * 0.8)(D)),
        }
    _B_in = _B_setup()

    return {
        "A_u": _A_in["u"],
        "A_A_re": _A_in["A_re"],
        "A_A_im": _A_in["A_im"],
        "A_B_re": _A_in["B_re"],
        "A_B_im": _A_in["B_im"],
        "A_C_re": _A_in["C_re"],
        "A_C_im": _A_in["C_im"],
        "A_log_dt": _A_in["log_dt"],
        "A_Dskip": _A_in["Dskip"],
        "B_x": _B_in["x"],
        "B_w1": _B_in["w1"],
        "B_b1": _B_in["b1"],
        "B_w2": _B_in["w2"],
        "B_b2": _B_in["b2"],
    }

def reference(A_u, A_A_re, A_A_im, A_B_re, A_B_im, A_C_re, A_C_im, A_log_dt, A_Dskip, B_x, B_w1, B_b1, B_w2, B_b2):
    def _A_ref(u, A_re, A_im, B_re, B_im, C_re, C_im, log_dt, Dskip):
        Bsz, L, D = u.shape
        dt = torch.exp(log_dt)[:, None]
        A = A_re + 1j * A_im
        Bc = B_re + 1j * B_im
        Cc = C_re + 1j * C_im
        logdA = dt * A
        dB = dt * Bc
        l = (lambda x, dt: x.to(dt))(torch.arange(L), A_re.dtype)
        P = torch.exp(logdA[:, :, None] * l[None, None, :])
        K = torch.einsum("dn,dnl,dn->dl", Cc, P, dB).real
        L2 = 2 * L
        Kp = _pad(K, ((0, 0), (0, L)))
        up = (lambda x, *d: x.permute(*d))(u, 0, 2, 1)
        up = _pad(up, ((0, 0), (0, 0), (0, L)))
        Kf = (lambda x, axes=(-2,-1): torch.fft.rfft2(x.float(), dim=axes))(Kp[:, None, :], axes=(-2, -1))
        Uf = (lambda x, axes=(-2,-1): torch.fft.rfft2(x.float(), dim=axes))(up[:, :, None, :], axes=(-2, -1))
        Yf = Uf * Kf[None, :, :, :]
        y = (lambda x, s, axes=(-2,-1): torch.fft.irfft2(x, s=s, dim=axes).to(torch.bfloat16))(Yf, (1, L2), axes=(-2, -1))[:, :, 0, :L]
        y = (lambda x, *d: x.permute(*d))(y, 0, 2, 1) + u * Dskip[None, None, :]
        return y

    def _B_ref(x, w1, b1, w2, b2):
        h = torch.einsum("bsd,df->bsf", x, w1) + b1
        zero = torch.zeros_like(h)
        r = torch.where(h > zero, h, zero)
        h = r * r
        out = torch.einsum("bsf,fd->bsd", h, w2) + b2
        return out

    x = A_u
    x = x + _A_ref(_layernorm(x, axis=-1), A_A_re, A_A_im, A_B_re, A_B_im, A_C_re, A_C_im, A_log_dt, A_Dskip)
    x = x + _B_ref(_layernorm(x, axis=-1), B_w1, B_b1, B_w2, B_b2)
    x = x + _A_ref(_layernorm(x, axis=-1), A_A_re, A_A_im, A_B_re, A_B_im, A_C_re, A_C_im, A_log_dt, A_Dskip)
    x = x + _B_ref(_layernorm(x, axis=-1), B_w1, B_b1, B_w2, B_b2)
    return x
```

```python
import re

TRANS = ("v_exp_f32", "v_log_f32", "v_rcp_f32", "v_rsq_f32", "v_sqrt_f32", "v_sin_f32", "v_cos_f32")

def parse_regs(tok):
    tok = tok.strip()
    tok = tok.lstrip('-')
    m = re.fullmatch(r'abs\((.*)\)', tok)
    if m: tok = m.group(1)
    tok = tok.strip('|')
    m = re.fullmatch(r'([vas])(\d+)', tok)
    if m: return {(m.group(1), int(m.group(2)))}
    m = re.fullmatch(r'([vas])\[(\d+):(\d+)\]', tok)
    if m: return {(m.group(1), i) for i in range(int(m.group(2)), int(m.group(3)) + 1)}
    if tok in ('vcc', 'vcc_lo', 'vcc_hi'): return {('vcc', 0)}
    if tok in ('exec', 'exec_lo', 'exec_hi'): return {('exec', 0)}
    if tok == 'm0': return {('m0', 0)}
    return set()

class Ins:
    def __init__(self, text):
        self.text = text
        t = text.split(';')[0].strip()
        self.op = t.split()[0] if t else ''
        rest = t[len(self.op):].strip()
        ops = []; depth = 0; cur = ''
        for ch in rest:
            if ch in '[(': depth += 1
            if ch in '])': depth -= 1
            if ch == ',' and depth == 0:
                ops.append(cur.strip()); cur = ''
            else: cur += ch
        if cur.strip(): ops.append(cur.strip())
        mods = ''
        if ops:
            parts = ops[-1].split(None, 1)
            ops[-1] = parts[0]
            mods = parts[1] if len(parts) > 1 else ''
        self.ops = ops; self.mods = mods
        op = self.op
        self.is_mfma = op.startswith('v_mfma')
        self.is_valu = op.startswith('v_') and not self.is_mfma
        self.is_trans = any(op.startswith(x) for x in TRANS)
        self.is_dot = op.startswith('v_dot')
        self.is_perml = op.startswith('v_permlane')
        self.is_dpp = '_dpp' in op
        self.is_vmem = op.startswith('buffer_') or op.startswith('global_')
        self.is_ds = op.startswith('ds_')
        self.is_salu = op.startswith('s_')
        self.is_lds_dma = self.is_vmem and (' lds' in (' ' + mods) or '_lds_' in op)
        R = [parse_regs(o) for o in ops]
        self.dst = set(); self.src = set(); self.srcC = set(); self.srcAB = set(); self.store_data = set()
        if self.is_mfma:
            self.dst = R[0]; self.srcAB = R[1] | R[2]; self.srcC = R[3]; self.src = self.srcAB | self.srcC
            self.passes = 8 if '32x32x16' in op else 4 if '16x16x32' in op else None
            assert self.passes
        elif self.is_valu:
            if self.is_perml:
                self.dst = R[0] | R[1]; self.src = R[0] | R[1]
            elif op.startswith('v_cmp'):
                self.dst = R[0]; self.src = set().union(*R[1:])
            elif op.startswith(('v_add_co', 'v_sub_co', 'v_addc_co', 'v_subb_co')):
                self.dst = R[0] | R[1]; self.src = set().union(*R[2:])
            else:
                self.dst = R[0]; self.src = set().union(*R[1:]) if len(R) > 1 else set()
                if op.startswith(('v_fmac', 'v_dot2c', 'v_pk_fmac')) or self.is_dpp or 'sdwa' in op:
                    self.src |= R[0]
                if op.startswith('v_cndmask') and len(R) == 3: self.src |= {('vcc', 0)}
        elif self.is_vmem:
            allr = set().union(*R) if R else set()
            if 'store' in op or ('atomic' in op and 'sc0' not in mods):
                self.src = allr
                if op.startswith('buffer_'): self.store_data = R[0]
                else: self.store_data = R[1]
                self.wide = ('x3' in op or 'x4' in op)
            elif self.is_lds_dma:
                self.src = allr | {('m0', 0)}
            else:
                self.dst = R[0]; self.src = set().union(*R[1:])
                if 'atomic' in op: self.src |= R[0]
        elif self.is_ds:
            if op.startswith(('ds_read', 'ds_bpermute', 'ds_permute', 'ds_swizzle')):
                self.dst = R[0]; self.src = set().union(*R[1:])
                if 'd16' in op: self.src |= R[0]
            else:
                self.src = set().union(*R)
        elif self.is_salu:
            if op.startswith(('s_cmp', 's_cbranch', 's_branch', 's_waitcnt', 's_barrier', 's_nop', 's_endpgm', 's_setprio', 's_sleep')):
                self.src = set().union(*R) if R else set()
            else:
                self.dst = R[0] if R else set(); self.src = set().union(*R[1:]) if len(R) > 1 else set()
                if 'saveexec' in op: self.dst |= {('exec', 0)}
    def states(self):
        if self.op == 's_nop': return int(self.ops[0], 0) + 1
        return 1

def vregs(s): return {r for r in s if r[0] in 'va'}
def sregs(s): return {r for r in s if r[0] in ('s', 'vcc')}

def required(p, c):
    need = 0
    if p.is_valu:
        pv = vregs(p.dst); ps = sregs(p.dst)
        if pv:
            if c.is_mfma and (pv & c.src): need = max(need, 2)
            if c.is_perml and (pv & c.src): need = max(need, 2)
            if c.is_dpp and (pv & c.src): need = max(need, 2)
            if c.op.startswith(('v_readfirstlane', 'v_readlane')) and (pv & c.src): need = max(need, 1)
            if p.is_trans and c.is_valu and not c.is_trans and (pv & c.src): need = max(need, 1)
            if p.is_trans and (c.is_vmem or c.is_ds or c.is_trans) and (pv & c.src): need = max(need, 1)
            if ('sdwa' in p.op) and c.is_valu and (pv & (c.src | c.dst)): need = max(need, 1)
            if p.is_dot:
                if c.op.split('_e')[0] == p.op.split('_e')[0] and c.is_dot:
                    ab = set().union(*[parse_regs(o) for o in c.ops[1:3]])
                    if pv & ab: need = max(need, 3)
                elif pv & (c.src | c.dst): need = max(need, 3)
        if ps:
            if c.is_vmem and (ps & c.src): need = max(need, 5)
            if c.is_valu and (ps & c.src):
                need = max(need, 4 if c.op.startswith(('v_readlane', 'v_writelane')) else 2)
            if c.is_salu and (ps & c.src): need = max(need, 2)
        if ('exec', 0) in p.dst:
            need = max(need, 5 if (c.is_dpp) else 4 if (c.is_mfma or c.is_perml or c.op.startswith('v_read')) else 0)
    if p.is_salu and ('m0', 0) in p.dst and c.is_lds_dma: need = max(need, 1)
    if p.is_vmem and p.store_data and getattr(p, 'wide', False):
        if c.is_valu and (p.store_data & c.dst): need = max(need, 2)
        elif (p.store_data & c.dst): need = max(need, 1)
    if p.is_mfma:
        n = p.passes
        D = p.dst
        if c.is_mfma:
            if D & c.srcAB: need = max(need, {4: 8, 8: 12}[n])
            if D & c.srcC:
                if not (c.srcC == D and c.passes == n): need = max(need, {4: 6, 8: 10}[n])
            elif D & c.dst: need = max(need, {4: 8, 8: 12}[n])
        elif (c.is_valu or c.is_vmem or c.is_ds) and (D & (c.src | c.dst)):
            need = max(need, {4: 8, 8: 12}[n])
        if c.is_valu and (p.srcC & c.dst): need = max(need, {4: 3, 8: 7}[n])
    return need

class Asm:
    def __init__(self):
        self.lines = []
    def __call__(self, text):
        for ln in text.split('\n'):
            ln = ln.strip()
            if not ln: continue
            if ln.endswith(':') or ln.startswith('.') or ln.startswith(';'):
                self.lines.append(('raw', ln))
            else:
                self.lines.append(('ins', ln))
    def raw(self, t): self.lines.append(('raw', t))
    def finish(self):
        out = []; hist = []
        nn = 0
        for kind, t in self.lines:
            if kind == 'raw':
                out.append(t)
                continue
            c = Ins(t)
            dist = 0; deficit = 0
            for p in reversed(hist):
                need = required(p, c)
                if need > dist: deficit = max(deficit, need - dist)
                dist += p.states()
                if dist >= 20: break
            while deficit > 0:
                k = min(deficit, 16)
                nop = Ins(f"s_nop {k-1}")
                out.append(f"    s_nop {k-1}"); hist.append(nop); deficit -= k; nn += 1
            out.append("    " + t); hist.append(c)
            if len(hist) > 40: hist = hist[-40:]
            if c.op in ('s_endpgm', 's_branch'): hist = []
        return "\n".join(out) + "\n"

def kdesc(name, vgpr, sgpr, accum):
    return f""".p2align 6
.amdhsa_kernel {name}
  .amdhsa_next_free_vgpr {vgpr}
  .amdhsa_next_free_sgpr {sgpr}
  .amdhsa_accum_offset {accum}
  .amdhsa_group_segment_fixed_size 0
  .amdhsa_kernarg_size 136
  .amdhsa_user_sgpr_count 2
  .amdhsa_user_sgpr_kernarg_segment_ptr 1
  .amdhsa_system_sgpr_workgroup_id_x 1
.end_amdhsa_kernel
"""
```

```python
import sys, struct
from asmlib import Asm, kdesc

NAME = "interleave_layers__ssm_conv_s4__dense_activation_squared_relu__prompt"
XT0, XT1, XT2, XT3 = 0x0, 0x200000, 0x400000, 0x600000
HF = 0x800000
W1F = 0xF00000
W2F = 0x10C0000
KR = 0x1280000
KR_CH = 8448; KR_PAR = 4224
ST0 = 0x16A0000
ST2 = 0x16A4000
CS = 0x16A8000
B1F = CS + 7168
B2F = CS + 14336
WS_USED = 0x16B0000
LOG2E = 0x3fb8aa3b
INV2PI = 0x3e22f983
ONES_BF = 0x3f803f80

A = Asm()
def f2u(f): return struct.unpack('<I', struct.pack('<f', f))[0]

def srd(base, lo, size):
    A(f"""s_mov_b32 s{base}, s{lo}
s_mov_b32 s{base+1}, s{lo+1}
s_mov_b32 s{base+2}, {size}
s_mov_b32 s{base+3}, 0x00020000""")

def entry(name):
    A(f""".globl {name}
.p2align 8
.type {name},@function
{name}:""")

def cmul(d, a, b):
    assert d != a and d != b
    A(f"v_pk_mul_f32 v[{d}:{d+1}], v[{a}:{a+1}], v[{b}:{b+1}] op_sel:[0,0] op_sel_hi:[0,1]")
    return lambda: A(f"v_pk_fma_f32 v[{d}:{d+1}], v[{a}:{a+1}], v[{b}:{b+1}], v[{d}:{d+1}] op_sel:[1,1,0] op_sel_hi:[1,0,1] neg_lo:[1,0,0]")

def cmuls(lst):
    fs = [cmul(*t) for t in lst]
    for f in fs: f()

PT_ROW = 528
PT_P = 21 * PT_ROW
PT_CH = 53 * PT_ROW
KF_BASE = 2 * PT_CH + 32
KF_CH = 4640
PREP_LDS = KF_BASE + 2 * KF_CH

def gen_prep():
    entry("prep_kernel")
    A("""s_cmp_ge_u32 s2, 504
s_cbranch_scc1 L_prep_end
s_load_dwordx2 s[4:5], s[0:1], 128
v_and_b32 v1, 63, v0
v_lshrrev_b32 v2, 6, v0
s_cmp_ge_u32 s2, 256
s_cbranch_scc1 L_prep_other""")
    A("""s_load_dwordx16 s[16:31], s[0:1], 0
s_lshl_b32 s3, s2, 9
v_lshlrev_b32 v3, 1, v0
v_add_u32 v3, s3, v3
v_lshrrev_b32 v4, 7, v0
s_lshl_b32 s6, s2, 2
v_lshl_add_u32 v5, v4, 1, s6
s_waitcnt lgkmcnt(0)
global_load_ushort v16, v5, s[30:31]
global_load_ushort v10, v3, s[18:19]
global_load_ushort v11, v3, s[20:21]
global_load_ushort v12, v3, s[22:23]
global_load_ushort v13, v3, s[24:25]
global_load_ushort v14, v3, s[26:27]
global_load_ushort v15, v3, s[28:29]""")
    srd(8, 4, WS_USED)
    A(f"""v_lshlrev_b32 v6, 3, v0
v_sub_u32 v6, 2047, v6
v_cvt_f32_i32 v6, v6""")
    for i in range(9):
        A("v_mov_b32 v100, v6" if i == 0 else f"v_subrev_f32 v{100+i}, 0x{f2u(float(i)):08x}, v6")
    for i in range(0, 10, 2):
        A(f"v_cvt_pk_bf16_f32 v{110+i//2}, v{100+i}, v{100+min(i+1,8)}")
    for i in range(9):
        if i % 2 == 0: A(f"v_lshlrev_b32 v{100+i}, 16, v{110+i//2}")
        else: A(f"v_and_b32 v{100+i}, 0xffff0000, v{110+i//2}")
    for i in range(9):
        A(f"v_cvt_i32_f32 v{100+i}, v{100+i}")
    A(f"s_mov_b32 s7, {KF_BASE}")
    for i in range(9):
        A(f"v_lshl_add_u32 v{100+i}, v{100+i}, 1, s7")
    A(f"""v_and_b32 v7, 127, v0
v_mul_u32_u24 v9, {PT_CH}, v4
v_lshl_add_u32 v9, v7, 2, v9
v_mul_u32_u24 v8, {KF_CH}, v4
v_mov_b32 v7, 0
ds_write_b32 v8, v7 offset:{KF_BASE-4}
s_waitcnt vmcnt(0)""")
    for r in range(10, 17):
        A(f"v_lshlrev_b32 v{r}, 16, v{r}")
    A(f"""v_mul_f32 v16, 0x{LOG2E:08x}, v16
v_exp_f32 v16, v16
v_cvt_pk_bf16_f32 v16, v16, v16
v_lshlrev_b32 v16, 16, v16
v_mul_f32 v10, v16, v10
v_mul_f32 v11, v16, v11
v_mul_f32 v12, v16, v12
v_mul_f32 v13, v16, v13
v_mul_f32 v10, 0x{LOG2E:08x}, v10
v_mul_f32 v11, 0x{INV2PI:08x}, v11""")
    A("""v_mul_f32 v26, 0x41000000, v10
v_mul_f32 v27, 0x43800000, v10
v_mul_f32 v28, 0x41000000, v11
v_mul_f32 v29, 0x43800000, v11
v_fract_f32 v11, v11
v_fract_f32 v28, v28
v_fract_f32 v29, v29
v_exp_f32 v10, v10
v_exp_f32 v26, v26
v_exp_f32 v27, v27
v_cos_f32 v20, v11
v_sin_f32 v21, v11
v_cos_f32 v22, v28
v_sin_f32 v23, v28
v_cos_f32 v24, v29
v_sin_f32 v25, v29""")
    cmuls([(30, 14, 12)])
    A("""v_pk_mul_f32 v[20:21], v[20:21], v[10:11] op_sel_hi:[1,0]
v_pk_mul_f32 v[22:23], v[22:23], v[26:27] op_sel_hi:[1,0]
v_pk_mul_f32 v[24:25], v[24:25], v[26:27] op_sel:[0,1] op_sel_hi:[1,1]""")
    tmpc = [0]
    def wP(row, r):
        t = 90 + (tmpc[0] % 8); tmpc[0] += 1
        A(f"v_cvt_pk_bf16_f32 v{t}, v{r}, -v{r+1}")
        A(f"ds_write_b32 v9, v{t} offset:{row*PT_ROW}")
    def wQ(j, r):
        t = 90 + (tmpc[0] % 8); tmpc[0] += 1
        A(f"v_cvt_pk_bf16_f32 v{t}, v{r}, v{r+1}")
        A(f"ds_write_b32 v9, v{t} offset:{PT_P + j*PT_ROW}")
    prow = {}
    for g in range(4):
        prow[g] = 4*g; prow[4+g] = 4*g+1; prow[256+2*g] = 4*g+2; prow[1280+256*g] = 4*g+3
    prow[512] = 16; prow[516] = 17; prow[768] = 18; prow[772] = 19; prow[1024] = 20
    A(f"v_mov_b32 v90, 0x00003f80\nds_write_b32 v9, v90 offset:{PT_P}")
    tmpc[0] = 1
    wP(prow[0], 30); wQ(1, 22)
    cmuls([(32, 30, 20), (40, 30, 24), (46, 20, 20), (56, 22, 22)])
    wP(prow[1], 32); wP(prow[256], 40); wQ(2, 56)
    cmuls([(34, 32, 20), (42, 40, 24), (48, 46, 46), (58, 56, 22), (68, 56, 56), (70, 40, 46)])
    wP(prow[2], 34); wP(prow[512], 42); wQ(3, 58); wQ(4, 68); wP(prow[258], 70)
    cmuls([(32, 34, 20), (44, 42, 24), (50, 46, 48), (62, 22, 68), (64, 56, 68), (66, 58, 68), (70, 40, 48), (72, 42, 48)])
    wP(prow[3], 32); wP(prow[768], 44); wQ(5, 62); wQ(6, 64); wQ(7, 66); wP(prow[260], 70); wP(prow[516], 72)
    cmuls([(34, 32, 20), (36, 44, 24), (70, 40, 50), (72, 44, 48), (52, 68, 68), (54, 62, 68), (56, 64, 68), (58, 66, 68)])
    wP(prow[4], 34); wP(prow[1024], 36); wP(prow[262], 70); wP(prow[772], 72)
    for k in range(4): wQ(8+k, 52+2*k)
    pc, gc, qc = 34, 36, 52
    for step in range(5):
        lst = []
        pn = 32 if pc == 34 else 34; gn = 38 if gc == 36 else 36; qn = 60 if qc == 52 else 52
        if step < 3: lst.append((pn, pc, 20))
        if step < 4: lst.append((gn, gc, 24))
        for k in range(4): lst.append((qn+2*k, qc+2*k, 68))
        cmuls(lst)
        if step < 3: wP(prow[5+step], pn); pc = pn
        if step < 4: wP(prow[1280+256*step], gn); gc = gn
        for k in range(4): wQ(12+4*step+k, qn+2*k)
        qc = qn
    A(f"""v_and_b32 v3, 15, v1
v_lshrrev_b32 v5, 4, v1
v_lshrrev_b32 v6, 1, v2
v_and_b32 v7, 1, v2
v_mul_u32_u24 v8, {PT_CH}, v6
v_lshl_add_u32 v8, v5, 4, v8
v_lshrrev_b32 v10, 2, v3
v_lshlrev_b32 v10, 1, v10
v_and_b32 v11, 1, v3
v_add_u32 v10, v10, v11
v_min_u32 v10, 4, v10
v_add_u32 v10, 16, v10
v_mul_u32_u24 v10, {PT_ROW}, v10
v_add_u32 v10, v10, v8
v_lshl_add_u32 v11, v7, 4, v3
v_mul_u32_u24 v12, {PT_ROW}, v11
v_add_u32 v12, v12, v8
v_mul_u32_u24 v13, {PT_ROW}, v3
v_add_u32 v13, v13, v8
v_mul_u32_u24 v14, {KF_CH}, v6
v_lshl_add_u32 v14, v11, 4, v14
v_lshl_add_u32 v15, v5, 1, v14
v_lshl_add_u32 v16, v5, 2, v14
v_lshl_add_u32 v17, v5, 9, v14
s_waitcnt lgkmcnt(0)
s_barrier""")
    for ks in range(8):
        A(f"ds_read_b128 v[{120+12*ks}:{123+12*ks}], v13 offset:{64*ks}")
        A(f"ds_read_b128 v[{124+12*ks}:{127+12*ks}], v12 offset:{PT_P+64*ks}")
        A(f"ds_read_b128 v[{128+12*ks}:{131+12*ks}], v10 offset:{64*ks}")
    for ks in range(8):
        rem = 3*(7-ks)
        A(f"s_waitcnt lgkmcnt({min(rem,15)})")
        c0 = "0" if ks == 0 else "v[20:23]"; c1 = "0" if ks == 0 else "v[24:27]"
        A(f"v_mfma_f32_16x16x32_bf16 v[20:23], v[{120+12*ks}:{123+12*ks}], v[{124+12*ks}:{127+12*ks}], {c0}")
        A(f"v_mfma_f32_16x16x32_bf16 v[24:27], v[{128+12*ks}:{131+12*ks}], v[{124+12*ks}:{127+12*ks}], {c1}")
    A(f"""v_cvt_pk_bf16_f32 v28, v20, v21
v_cvt_pk_bf16_f32 v29, v22, v23
v_cvt_pk_bf16_f32 v30, v24, v25
ds_write_b16 v15, v28 offset:{KF_BASE}
ds_write_b16_d16_hi v15, v28 offset:{KF_BASE+8}
ds_write_b16 v16, v29 offset:{KF_BASE+512}
ds_write_b16_d16_hi v17, v29 offset:{KF_BASE+2560}
s_mov_b32 exec_hi, 0xffff
ds_write_b16 v17, v30 offset:{KF_BASE+1024}
s_mov_b32 exec_hi, 0
ds_write_b16_d16_hi v17, v30 offset:{KF_BASE+1032}
s_mov_b64 exec, -1
s_waitcnt lgkmcnt(0)
s_barrier""")
    for ch in range(2):
        for i in range(9):
            A(f"ds_read_u16 v{40+10*ch+i}, v{100+i} offset:{ch*KF_CH}")
    A(f"""s_mul_i32 s6, s2, {2*KR_CH}
s_add_u32 s6, s6, {KR}
s_add_u32 s7, s6, {KR_PAR}
s_add_u32 s12, s6, {KR_CH}
s_add_u32 s13, s7, {KR_CH}
v_lshlrev_b32 v3, 4, v0""")
    for ch in range(2):
        A(f"s_waitcnt lgkmcnt({9 if ch == 0 else 0})")
        for par in range(2):
            o = 68 + 8*ch + 4*par
            for k in range(4):
                A(f"v_lshl_or_b32 v{o+k}, v{40+10*ch+2*k+par+1}, 16, v{40+10*ch+2*k+par}")
            A(f"buffer_store_dwordx4 v[{o}:{o+3}], v3, s[8:11], s{[6,7,12,13][2*ch+par]} offen")
    A(f"""v_mul_u32_u24 v3, {KR_PAR}, v0
v_add_u32 v3, 4096, v3
v_mov_b32 v64, 0
v_mov_b32 v65, 0
v_mov_b32 v66, 0
v_mov_b32 v67, 0
v_cmp_gt_u32 vcc, 4, v0
s_and_saveexec_b64 s[14:15], vcc
s_cbranch_execz L_prep_end
buffer_store_dwordx4 v[64:67], v3, s[8:11], s6 offen
s_endpgm""")
    A("""L_prep_other:
v_readfirstlane_b32 s33, v2
v_lshrrev_b32 v4, 4, v1
v_and_b32 v5, 15, v1
v_lshrrev_b32 v6, 2, v5
v_and_b32 v7, 3, v1
s_cmp_ge_u32 s2, 384
s_cbranch_scc1 L_prep_w""")
    A(f"""s_load_dwordx2 s[6:7], s[0:1], 0
s_sub_u32 s3, s2, 256
s_lshr_b32 s16, s3, 2
s_and_b32 s17, s3, 3
v_lshlrev_b32 v8, 2, v4
v_xor_b32 v8, v8, v5
v_lshlrev_b32 v8, 4, v8
v_lshl_add_u32 v8, v4, 10, v8
v_lshlrev_b32 v9, 4, v1
s_lshl_b32 s18, s16, 16
s_lshl_b32 s19, s33, 14
s_add_u32 s18, s18, s19
s_lshl_b32 s19, s17, 8
s_add_u32 s18, s18, s19
s_lshl_b32 s19, s33, 12
s_lshl_b32 s20, s3, 14
s_add_u32 s20, s20, s19
s_waitcnt lgkmcnt(0)""")
    srd(8, 4, WS_USED); srd(12, 6, 0x200000)
    for i in range(4):
        A(f"""s_add_u32 m0, s19, {1024*i}
s_add_u32 s21, s18, {4096*i}
buffer_load_dwordx4 v8, s[12:15], s21 offen lds""")
    for i in range(4):
        A(f"buffer_load_dwordx4 v[{20+4*i}:{23+4*i}], v9, s[12:15], s20 offen offset:{1024*i}")
    A(f"""v_mov_b32 v10, 0
s_lshl_b32 s21, s3, 7
s_add_u32 s21, s21, {ST2}
v_lshlrev_b32 v11, 2, v0
v_cmp_gt_u32 vcc, 32, v0
s_and_saveexec_b64 s[22:23], vcc
s_cbranch_execz L_prep_x1
buffer_store_dword v10, v11, s[8:11], s21 offen
L_prep_x1:
s_mov_b64 exec, s[22:23]""")
    A(f"""v_lshl_add_u32 v11, v4, 3, v6
v_lshlrev_b32 v11, 8, v11
v_xor_b32 v12, s33, v6
v_lshl_add_u32 v11, v12, 6, v11
v_lshl_add_u32 v11, v7, 3, v11
v_lshlrev_b32 v12, 12, v5
v_lshl_add_u32 v12, v4, 4, v12
s_lshl_b32 s21, s17, 19
s_lshl_b32 s22, s33, 17
s_add_u32 s21, s21, s22
s_lshl_b32 s22, s16, 7
s_add_u32 s21, s21, s22
s_add_u32 s21, s21, {XT0}
s_add_u32 s22, s21, 0x10000""")
    for i in range(8): A(f"v_mov_b32 v{40+i}, 0")
    A("s_waitcnt vmcnt(0)\ns_barrier")
    for dd in range(2):
        for lh in range(2):
            for hh in range(2):
                d = 60 + 8*dd + 4*lh + 2*hh
                A(f"ds_read_b64_tr_b16 v[{d}:{d+1}], v11 offset:{(32*lh+4*hh)*256 + 32*dd}")
    for i in range(4):
        for k in range(4):
            A(f"v_dot2c_f32_bf16 v{40+2*i}, 0x{ONES_BF:08x}, v{20+4*i+k}")
            A(f"v_dot2c_f32_bf16 v{41+2*i}, v{20+4*i+k}, v{20+4*i+k}")
    A("s_waitcnt lgkmcnt(0)")
    for dd in range(2):
        for lh in range(2):
            d = 60 + 8*dd + 4*lh
            A(f"buffer_store_dwordx4 v[{d}:{d+3}], v12, s[8:11], s{21+dd} offen offset:{64*lh}")
    for i in range(4):
        A(f"v_permlane32_swap_b32 v{40+2*i}, v{41+2*i}")
    for i in range(4):
        A(f"v_add_f32 v{40+2*i}, v{40+2*i}, v{41+2*i}")
    A("""v_permlane16_swap_b32 v40, v42
v_permlane16_swap_b32 v44, v46
v_add_f32 v40, v40, v42
v_add_f32 v44, v44, v46""")
    for sh in (8, 4, 2, 1):
        A(f"v_add_f32_dpp v40, v40, v40 row_ror:{sh} row_mask:0xf bank_mask:0xf")
        A(f"v_add_f32_dpp v44, v44, v44 row_ror:{sh} row_mask:0xf bank_mask:0xf")
    A(f"""v_and_b32 v13, 1, v4
v_lshlrev_b32 v13, 2, v13
v_lshrrev_b32 v14, 1, v4
v_lshl_add_u32 v13, v14, 13, v13
s_lshl_b32 s21, s3, 6
s_lshl_b32 s22, s33, 4
s_add_u32 s21, s21, s22
s_add_u32 s21, s21, {ST0}
v_cmp_eq_u32 vcc, 0, v5
s_and_saveexec_b64 s[22:23], vcc
s_cbranch_execz L_prep_end
buffer_store_dword v40, v13, s[8:11], s21 offen
buffer_store_dword v44, v13, s[8:11], s21 offen offset:8
s_endpgm""")
    A(f"""L_prep_w:
s_load_dwordx8 s[24:31], s[0:1], 80
v_lshrrev_b32 v8, 2, v1
v_lshlrev_b32 v9, 4, v1
v_lshrrev_b32 v10, 1, v4
v_and_b32 v11, 1, v4
v_lshlrev_b32 v11, 5, v11
v_lshl_add_u32 v11, v7, 3, v11
v_lshl_add_u32 v11, v6, 6, v11
s_lshl_b32 s19, s33, 13
v_add_u32 v11, s19, v11
s_cmp_ge_u32 s2, 440
s_cbranch_scc1 L_prep_w2""")
    A(f"""s_sub_u32 s3, s2, 384
v_mul_u32_u24 v8, 3584, v8
v_lshl_add_u32 v8, v7, 4, v8
v_lshl_add_u32 v11, v10, 9, v11
s_mul_i32 s18, s33, {128*3584}
s_lshl_b32 s20, s3, 6
s_add_u32 s18, s18, s20
s_lshl_b32 s21, s3, 15
s_add_u32 s21, s21, s19
s_add_u32 s21, s21, {W1F}
s_add_u32 s22, s21, 4096
v_lshlrev_b32 v12, 1, v1
v_mov_b32 v40, 0
s_waitcnt lgkmcnt(0)""")
    srd(8, 4, WS_USED); srd(12, 24, 512*3584)
    A("v_add_u32 v12, s20, v12\nv_min_u32 v12, 3582, v12\nglobal_load_ushort v13, v12, s[26:27]")
    for i in range(8):
        A(f"""s_add_u32 m0, s19, {1024*i}
s_add_u32 s23, s18, {16*3584*i}
buffer_load_dwordx4 v8, s[12:15], s23 offen lds""")
    A("s_waitcnt vmcnt(0)")
    for i in range(8):
        for hh in range(2):
            d = 48 + 4*i + 2*hh
            A(f"ds_read_b64_tr_b16 v[{d}:{d+1}], v11 offset:{1024*i + 256*hh}")
    for i in range(8):
        A(f"s_waitcnt lgkmcnt({14-2*i})")
        A(f"buffer_store_dwordx4 v[{48+4*i}:{51+4*i}], v9, s[8:11], s{21 + i//4} offen offset:{1024*(i%4)}")
        for k in range(4):
            A(f"v_dot2c_f32_bf16 v40, 0x{ONES_BF:08x}, v{48+4*i+k}")
    A(f"""v_mov_b32 v41, v40
v_permlane32_swap_b32 v40, v41
v_add_f32 v40, v40, v41
v_and_b32 v14, 31, v1
v_lshlrev_b32 v14, 2, v14
s_lshl_b32 s23, s33, 7
v_add_u32 v15, s23, v14
ds_write_b32 v15, v40 offset:32768
s_waitcnt lgkmcnt(0)
s_barrier
s_cmp_lg_u32 s33, 0
s_cbranch_scc1 L_prep_end
ds_read_b32 v42, v14 offset:32768
ds_read_b32 v43, v14 offset:32896
ds_read_b32 v44, v14 offset:33024
ds_read_b32 v45, v14 offset:33152
s_lshl_b32 s23, s3, 7
s_add_u32 s23, s23, {CS}
s_add_u32 s24, s23, {B1F-CS}
v_lshlrev_b32 v13, 16, v13
s_waitcnt lgkmcnt(0)
v_add_f32 v42, v42, v43
v_add_f32 v44, v44, v45
v_add_f32 v42, v42, v44
s_mov_b32 exec_hi, 0
buffer_store_dword v42, v14, s[8:11], s23 offen
buffer_store_dword v13, v14, s[8:11], s24 offen
s_endpgm""")
    A(f"""L_prep_w2:
s_sub_u32 s3, s2, 440
s_lshr_b32 s16, s3, 2
s_and_b32 s17, s3, 3
v_lshlrev_b32 v8, 10, v8
v_lshl_add_u32 v8, v7, 4, v8
v_lshl_add_u32 v11, v10, 8, v11
s_mul_i32 s18, s17, {448*1024}
s_mul_i32 s20, s33, {112*1024}
s_add_u32 s18, s18, s20
s_lshl_b32 s20, s16, 6
s_add_u32 s18, s18, s20
s_mul_i32 s21, s16, {112*1024}
s_mul_i32 s22, s17, {28*1024}
s_add_u32 s21, s21, s22
s_mul_i32 s22, s33, {7*1024}
s_add_u32 s21, s21, s22
s_add_u32 s21, s21, {W2F}
s_add_u32 s22, s21, 4096
v_lshlrev_b32 v12, 1, v1
v_add_u32 v12, s20, v12
v_min_u32 v12, 1022, v12
s_waitcnt lgkmcnt(0)""")
    srd(8, 4, WS_USED); srd(12, 28, 1792*1024)
    A("global_load_ushort v13, v12, s[30:31]")
    for i in range(7):
        A(f"""s_add_u32 m0, s19, {1024*i}
s_add_u32 s23, s18, {16*1024*i}
buffer_load_dwordx4 v8, s[12:15], s23 offen lds""")
    A("s_waitcnt vmcnt(0)")
    for i in range(7):
        for hh in range(2):
            d = 48 + 4*i + 2*hh
            A(f"ds_read_b64_tr_b16 v[{d}:{d+1}], v11 offset:{1024*i + 512*hh}")
    for i in range(7):
        A(f"s_waitcnt lgkmcnt({12-2*i})")
        A(f"buffer_store_dwordx4 v[{48+4*i}:{51+4*i}], v9, s[8:11], s{21 + i//4} offen offset:{1024*(i%4)}")
    A(f"""s_or_b32 s23, s17, s33
s_cmp_lg_u32 s23, 0
s_cbranch_scc1 L_prep_end
v_lshlrev_b32 v13, 16, v13
v_lshlrev_b32 v14, 2, v1
s_lshl_b32 s23, s16, 7
s_add_u32 s23, s23, {B2F}
s_mov_b32 exec_hi, 0
buffer_store_dword v13, v14, s[8:11], s23 offen
L_prep_end:
s_endpgm""")

CV_KCOPY = 4160
CV_KCH = 8 * CV_KCOPY
CV_U = 2 * CV_KCH
CV_UCH = 96 * 80
CV_X = CV_U + 2 * CV_UCH
CV_XCH = 64 * 80
CV_EX = CV_X + 2 * CV_XCH
CONV_LDS = CV_EX + 16384

def rnd_pair(dst_lo, dst_hi, a, b, tmp):
    A(f"v_cvt_pk_bf16_f32 v{tmp}, v{a}, v{b}")
    A(f"v_lshlrev_b32 v{dst_lo}, 16, v{tmp}")
    A(f"v_and_b32 v{dst_hi}, 0xffff0000, v{tmp}")

def gen_conv():
    for nm, xin, st, xout in (("conv1_kernel", XT0, ST0, XT1), ("conv2_kernel", XT2, ST2, XT3)):
        entry(nm)
        A(f"""s_mov_b32 s20, {xin}
s_mov_b32 s21, {st}
s_mov_b32 s22, {xout}""")
        if nm == "conv1_kernel": A("s_branch L_conv_body")
    A(f"""L_conv_body:
s_cmp_ge_u32 s2, 256
s_cbranch_scc1 L_conv_end
s_load_dwordx2 s[4:5], s[0:1], 128
s_load_dwordx2 s[6:7], s[0:1], 64
v_and_b32 v1, 63, v0
v_lshrrev_b32 v2, 6, v0
v_lshlrev_b32 v3, 4, v0
v_lshlrev_b32 v4, 5, v0
v_readfirstlane_b32 s33, v2
v_lshlrev_b32 v5, 4, v1
s_lshl_b32 s3, s2, 13
s_add_u32 s20, s20, s3
s_add_u32 s23, s20, 4096
s_add_u32 s22, s22, s3
s_add_u32 s24, s21, 8192
s_lshl_b32 s3, s2, 2
s_waitcnt lgkmcnt(0)
s_load_dword s34, s[6:7], s3""")
    srd(8, 4, WS_USED)
    A("""buffer_load_dwordx4 v[16:19], v4, s[8:11], s21 offen
buffer_load_dwordx4 v[20:23], v4, s[8:11], s21 offen offset:16
buffer_load_dwordx4 v[24:27], v4, s[8:11], s24 offen
buffer_load_dwordx4 v[28:31], v4, s[8:11], s24 offen offset:16
buffer_load_dwordx4 v[8:11], v3, s[8:11], s20 offen
buffer_load_dwordx4 v[12:15], v3, s[8:11], s23 offen""")
    A(f"""s_lshr_b32 s25, s33, 1
s_and_b32 s26, s33, 1
s_lshl_b32 s27, s2, 1
s_add_u32 s27, s27, s25
s_mul_i32 s27, s27, {KR_CH}
s_add_u32 s27, s27, {KR}
s_lshl_b32 s28, s26, 3
s_sub_u32 s27, s27, s28
s_mul_i32 s29, s25, {CV_KCH}
s_mul_i32 s28, s26, {4*CV_KCOPY}
s_add_u32 s29, s29, s28""")
    for j in range(4):
        goff = 2*(7-j) if j % 2 else KR_PAR + 2*(6-j)
        A(f"s_add_u32 m0, s29, {j*CV_KCOPY}\ns_add_u32 s30, s27, {goff}")
        for i in range(4):
            A(f"buffer_load_dwordx4 v5, s[8:11], s30 offen offset:{1024*i} lds")
    A(f"""v_mov_b32 v32, 0
v_mov_b32 v33, 0
v_mov_b32 v34, 0
v_mov_b32 v35, 0
v_lshrrev_b32 v6, 2, v0
v_and_b32 v7, 3, v0
v_mul_u32_u24 v36, {CV_KCOPY}, v6
v_lshl_add_u32 v36, v7, 4, v36
v_mul_u32_u24 v37, 80, v6
v_lshl_add_u32 v37, v7, 4, v37
v_add_u32 v48, {CV_U}, v3
v_cmp_gt_u32 vcc, 160, v0
s_and_saveexec_b64 s[36:37], vcc
ds_write_b128 v48, v[32:35]
ds_write_b128 v48, v[32:35] offset:{CV_UCH}
s_mov_b64 exec, s[36:37]
s_cmp_lg_u32 s33, 0
s_cbranch_scc1 L_conv_nz
ds_write_b128 v36, v[32:35] offset:4096
L_conv_nz:""")
    A(f"""v_and_b32 v38, 31, v1
v_lshrrev_b32 v39, 5, v1
v_and_b32 v40, 7, v38
v_mul_u32_u24 v40, {CV_KCOPY}, v40
v_lshrrev_b32 v41, 3, v38
v_sub_u32 v41, v39, v41
v_lshl_add_u32 v40, v41, 4, v40
s_mul_i32 s30, s25, {CV_KCH}
s_lshl_b32 s31, s26, 10
s_sub_u32 s30, s30, s31
s_add_u32 s30, s30, {16*255 - 32*94}
v_add_u32 v40, s30, v40
v_mul_u32_u24 v41, 80, v38
v_lshl_add_u32 v42, v39, 3, v41
v_lshl_add_u32 v41, v39, 4, v41
s_mul_i32 s30, s25, {CV_UCH}
s_mul_i32 s31, s26, {16*80}
s_sub_u32 s30, s30, s31
s_add_u32 s30, s30, {CV_U + 17*80}
v_add_u32 v41, s30, v41""")
    A("s_waitcnt vmcnt(18) lgkmcnt(0)")
    A(f"s_mov_b32 s36, 0x{f2u(1.0/512):08x}\ns_mov_b32 s38, 0x{f2u(1e-5):08x}")
    for i in range(8):
        A(f"v_mul_f32 v{16+i}, s36, v{16+i}")
        A(f"v_mul_f32 v{24+i}, s36, v{24+i}")
    for i in range(8):
        A(f"v_fma_f32 v{24+i}, -v{16+i}, v{16+i}, v{24+i}")
    for i in range(8):
        A(f"v_max_f32 v{24+i}, 0, v{24+i}")
    for i in range(0, 8, 2):
        rnd_pair(16+i, 17+i, 16+i, 17+i, 44+i//2)
        rnd_pair(24+i, 25+i, 24+i, 25+i, 48+i//2)
    for i in range(8):
        A(f"v_add_f32 v{24+i}, s38, v{24+i}")
    for i in range(0, 8, 2):
        rnd_pair(24+i, 25+i, 24+i, 25+i, 44+i//2)
    for i in range(8):
        A(f"v_sqrt_f32 v{24+i}, v{24+i}")
    for i in range(0, 8, 2):
        rnd_pair(24+i, 25+i, 24+i, 25+i, 44+i//2)
    for i in range(8):
        A(f"v_rcp_f32 v{24+i}, v{24+i}")
    A("s_waitcnt vmcnt(16)")
    A(f"v_add_u32 v37, {CV_U + 32*80}, v37")
    A(f"ds_write_b128 v37, v[8:11] offset:{CV_X - CV_U - 32*80}")
    A(f"ds_write_b128 v37, v[12:15] offset:{CV_X + CV_XCH - CV_U - 32*80}")
    for ch in range(2):
        src = 8 + 4*ch
        for k in range(4):
            A(f"v_lshlrev_b32 v{44+2*k}, 16, v{src+k}")
            A(f"v_and_b32 v{45+2*k}, 0xffff0000, v{src+k}")
        for k in range(4):
            A(f"v_pk_add_f32 v[{44+2*k}:{45+2*k}], v[{44+2*k}:{45+2*k}], v[{16+2*k}:{17+2*k}] neg_lo:[0,1] neg_hi:[0,1]")
        for k in range(4):
            rnd_pair(44+2*k, 45+2*k, 44+2*k, 45+2*k, 52+k)
        for k in range(4):
            A(f"v_pk_mul_f32 v[{44+2*k}:{45+2*k}], v[{44+2*k}:{45+2*k}], v[{24+2*k}:{25+2*k}]")
        for k in range(4):
            A(f"v_cvt_pk_bf16_f32 v{56+4*ch+k}, v{44+2*k}, v{45+2*k}")
        A(f"ds_write_b128 v37, v[{56+4*ch}:{59+4*ch}] offset:{ch*CV_UCH}")
    A("s_waitcnt vmcnt(0) lgkmcnt(0)\ns_barrier")
    def reads(it, base):
        kk, h = it // 2, it % 2
        s0 = 2*kk - h
        A(f"ds_read_b128 v[{base}:{base+3}], v40 offset:{32*(94-s0)}")
        A(f"ds_read_b128 v[{base+4}:{base+7}], v41 offset:{(15-kk)*80 + 32*h}")
        A(f"ds_read_b128 v[{base+8}:{base+11}], v40 offset:{32*(94-s0-64)}")
        A(f"ds_read_b128 v[{base+12}:{base+15}], v41 offset:{(15-kk+32)*80 + 32*h}")
    NSET = 3
    fb = lambda it: 128 + 16*(it % NSET)
    reads(0, fb(0)); reads(1, fb(1))
    for it in range(32):
        b = fb(it)
        if it + 2 < 32:
            reads(it+2, fb(it+2)); A("s_waitcnt lgkmcnt(8)")
        elif it + 1 < 32: A("s_waitcnt lgkmcnt(4)")
        else: A("s_waitcnt lgkmcnt(0)")
        c0 = "0" if it == 0 else "v[96:111]"; c1 = "0" if it == 0 else "v[112:127]"
        A(f"v_mfma_f32_32x32x16_bf16 v[96:111], v[{b}:{b+3}], v[{b+4}:{b+7}], {c0}")
        A(f"v_mfma_f32_32x32x16_bf16 v[112:127], v[{b+8}:{b+11}], v[{b+4}:{b+7}], {c1}")
        A(f"v_mfma_f32_32x32x16_bf16 v[112:127], v[{b}:{b+3}], v[{b+12}:{b+15}], v[112:127]")
    A(f"""s_lshl_b32 s30, s33, 12
s_add_u32 s30, s30, {CV_EX}
v_add_u32 v43, s30, v5
s_xor_b32 s31, s33, 1
s_lshl_b32 s31, s31, 12
s_add_u32 s31, s31, {CV_EX}
v_add_u32 v44, s31, v5
s_mul_i32 s30, s25, {CV_UCH}
s_mul_i32 s31, s26, {32*80}
s_add_u32 s30, s30, s31
s_add_u32 s30, s30, {CV_U + 32*80}
v_add_u32 v45, s30, v42
s_mul_i32 s30, s25, {CV_XCH}
s_add_u32 s30, s30, s31
s_add_u32 s30, s30, {CV_X}
v_add_u32 v46, s30, v42
s_lshl_b32 s35, s34, 16
s_and_b32 s34, s34, 0xffff0000
s_cmp_eq_u32 s25, 0
s_cselect_b32 s34, s35, s34
s_mov_b32 s35, s34
v_lshlrev_b32 v47, 6, v38
v_lshl_add_u32 v47, v39, 4, v47
s_lshl_b32 s30, s25, 12
s_lshl_b32 s31, s26, 11
s_add_u32 s22, s22, s30
s_add_u32 s22, s22, s31""")
    for q in range(4):
        A(f"ds_read_b64 v[{64+2*q}:{65+2*q}], v45 offset:{16*q}")
        A(f"ds_read_b64 v[{72+2*q}:{73+2*q}], v46 offset:{16*q}")
    A("s_cmp_eq_u32 s26, 0\ns_cbranch_scc1 L_conv_k0")
    for q in range(4): A(f"ds_write_b128 v43, v[{96+4*q}:{99+4*q}] offset:{1024*q}")
    for i in range(0, 16, 2): A(f"v_mov_b64 v[{96+i}:{97+i}], v[{112+i}:{113+i}]")
    A("s_branch L_conv_k1\nL_conv_k0:\ns_nop 7")
    for q in range(4): A(f"ds_write_b128 v43, v[{112+4*q}:{115+4*q}] offset:{1024*q}")
    A("L_conv_k1:\ns_waitcnt lgkmcnt(0)\ns_barrier")
    for q in range(4): A(f"ds_read_b128 v[{112+4*q}:{115+4*q}], v44 offset:{1024*q}")
    for k in range(8):
        A(f"v_lshlrev_b32 v{128+2*k}, 16, v{64+k}")
        A(f"v_and_b32 v{129+2*k}, 0xffff0000, v{64+k}")
    for k in range(8):
        A(f"v_pk_mul_f32 v[{128+2*k}:{129+2*k}], v[{128+2*k}:{129+2*k}], s[34:35]")
    for k in range(8):
        rnd_pair(128+2*k, 129+2*k, 128+2*k, 129+2*k, 64+k)
    for k in range(8):
        A(f"v_lshlrev_b32 v{144+2*k}, 16, v{72+k}")
        A(f"v_and_b32 v{145+2*k}, 0xffff0000, v{72+k}")
    A("s_waitcnt lgkmcnt(0)")
    for k in range(8):
        A(f"v_pk_add_f32 v[{96+2*k}:{97+2*k}], v[{96+2*k}:{97+2*k}], v[{112+2*k}:{113+2*k}]")
    for k in range(8):
        rnd_pair(96+2*k, 97+2*k, 96+2*k, 97+2*k, 64+k)
    for k in range(8):
        A(f"v_pk_add_f32 v[{96+2*k}:{97+2*k}], v[{96+2*k}:{97+2*k}], v[{128+2*k}:{129+2*k}]")
    for k in range(8):
        rnd_pair(96+2*k, 97+2*k, 96+2*k, 97+2*k, 64+k)
    for k in range(8):
        A(f"v_pk_add_f32 v[{96+2*k}:{97+2*k}], v[{96+2*k}:{97+2*k}], v[{144+2*k}:{145+2*k}]")
    for k in range(8):
        A(f"v_cvt_pk_bf16_f32 v{64+k}, v{96+2*k}, v{97+2*k}")
    for p in range(2):
        A(f"v_permlane32_swap_b32 v{64+4*p}, v{66+4*p}")
        A(f"v_permlane32_swap_b32 v{65+4*p}, v{67+4*p}")
    for p in range(2):
        A(f"buffer_store_dwordx4 v[{64+4*p}:{67+4*p}], v47, s[8:11], s22 offen offset:{32*p}")
    A("L_conv_end:\ns_endpgm")

G1_LDS = 131072 + 1024

def gen_g1():
    for nm, xin in (("g1a_kernel", XT1), ("g1b_kernel", XT3)):
        entry(nm)
        A(f"s_mov_b32 s20, {xin}")
        if nm == "g1a_kernel": A("s_branch L_g1_body")
    A(f"""L_g1_body:
s_cmp_ge_u32 s2, 224
s_cbranch_scc1 L_g1_end
s_load_dwordx2 s[4:5], s[0:1], 128
v_and_b32 v1, 63, v0
v_lshrrev_b32 v2, 6, v0
v_lshrrev_b32 v4, 4, v1
v_and_b32 v5, 15, v1
v_readfirstlane_b32 s33, v2
v_lshlrev_b32 v8, 2, v4
v_xor_b32 v8, v8, v5
v_lshlrev_b32 v8, 4, v8
v_lshl_add_u32 v8, v4, 12, v8
v_lshlrev_b32 v9, 4, v1
s_and_b32 s16, s2, 7
s_lshr_b32 s17, s2, 3
s_and_b32 s18, s17, 1
s_lshl_b32 s16, s16, 1
s_add_u32 s16, s16, s18
s_lshr_b32 s17, s17, 1
s_lshl_b32 s17, s17, 2
s_add_u32 s17, s17, s33
s_lshl_b32 s18, s16, 8
s_add_u32 s20, s20, s18
s_lshl_b32 s18, s33, 16
s_add_u32 s20, s20, s18
s_lshl_b32 s21, s33, 12
s_lshl_b32 s22, s17, 15
s_add_u32 s22, s22, {W1F}
s_waitcnt lgkmcnt(0)""")
    srd(8, 4, WS_USED)
    for st in range(8):
        for j in range(4):
            A(f"""s_add_u32 m0, s21, {st*16384 + j*1024}
s_add_u32 s23, s20, {(st*64 + j*4)*4096}
buffer_load_dwordx4 v8, s[8:11], s23 offen lds""")
        for j in range(4):
            ks = 4*st + j
            A(f"buffer_load_dwordx4 a[{4*ks}:{4*ks+3}], v9, s[8:11], s22 offen offset:{1024*j}")
        if st < 7: A("s_add_u32 s22, s22, 4096")
    A(f"""v_lshrrev_b32 v6, 2, v5
v_and_b32 v7, 3, v1
v_lshrrev_b32 v14, 1, v4
v_lshl_add_u32 v14, v14, 3, v6
v_lshlrev_b32 v14, 8, v14
v_and_b32 v15, 1, v4
v_lshl_add_u32 v14, v15, 5, v14
v_lshl_add_u32 v14, v7, 3, v14""")
    for j in range(4):
        A(f"v_xor_b32 v15, {j}, v6\nv_lshl_add_u32 v{10+j}, v15, 6, v14")
    A("s_lshl_b32 s23, s33, 6")
    for j in range(4): A(f"v_xor_b32 v{10+j}, s23, v{10+j}")
    A("v_mov_b32 v16, 0\nv_mov_b32 v17, 0")
    A(f"""v_lshrrev_b32 v3, 5, v1
v_lshlrev_b32 v18, 4, v3
s_lshl_b32 s24, s17, 7
s_add_u32 s24, s24, {CS}
s_add_u32 s25, s24, {B1F - CS}""")
    FB = lambda ks: 96 + 16*(ks % 2)
    def reads(ks):
        b = FB(ks)
        for j in range(4):
            for hh in range(2):
                off = (ks % 16)*4096 + hh*1024
                A(f"ds_read_b64_tr_b16 v[{b+4*j+2*hh}:{b+4*j+2*hh+1}], v{10+j} offset:{off}")
    extra = 0
    A("s_waitcnt vmcnt(56)\ns_barrier")
    reads(0)
    for ks in range(32):
        b = FB(ks)
        nxt = ks + 1
        if nxt < 32:
            if nxt % 4 == 0:
                st = nxt // 4
                if st == 2:
                    for q in range(4):
                        A(f"buffer_load_dwordx4 v[{64+4*q}:{67+4*q}], v18, s[8:11], s24 offen offset:{32*q}")
                        A(f"buffer_load_dwordx4 v[{80+4*q}:{83+4*q}], v18, s[8:11], s25 offen offset:{32*q}")
                    extra = 8
                A(f"s_waitcnt vmcnt({56 - 8*st + extra})\ns_barrier")
            if nxt == 16:
                for j in range(4): A(f"v_add_u32 v{10+j}, 0x10000, v{10+j}")
            reads(nxt)
            A("s_waitcnt lgkmcnt(8)")
        else:
            A("s_waitcnt lgkmcnt(0)")
        for j in range(4):
            a0 = 128 + 16*j
            c = "0" if ks == 0 else f"v[{a0}:{a0+15}]"
            A(f"v_mfma_f32_32x32x16_bf16 v[{a0}:{a0+15}], a[{4*ks}:{4*ks+3}], v[{b+4*j}:{b+4*j+3}], {c}")
            A(f"v_dot2c_f32_bf16 v16, 0x{ONES_BF:08x}, v{b+j}")
            A(f"v_dot2c_f32_bf16 v17, v{b+j}, v{b+j}")
    A(f"""v_mov_b32 v20, v16
v_mov_b32 v21, v17
v_permlane32_swap_b32 v16, v20
v_permlane32_swap_b32 v17, v21
v_add_f32 v16, v16, v20
v_add_f32 v17, v17, v21
v_mul_f32 v16, 0x{f2u(1.0/512):08x}, v16
v_mul_f32 v17, 0x{f2u(1.0/512):08x}, v17
v_fma_f32 v17, -v16, v16, v17
v_max_f32 v17, 0, v17""")
    rnd_pair(16, 17, 16, 17, 20)
    A(f"""v_add_f32 v17, 0x{f2u(1e-5):08x}, v17
v_cvt_pk_bf16_f32 v17, v17, v17
v_lshlrev_b32 v17, 16, v17
v_sqrt_f32 v17, v17
v_cvt_pk_bf16_f32 v17, v17, v17
v_lshlrev_b32 v17, 16, v17
v_rcp_f32 v22, v17
v_and_b32 v19, 31, v1
v_lshlrev_b32 v19, 3, v19
v_mul_f32 v23, v22, v16
s_lshl_b32 s23, s33, 8
s_add_u32 s23, s23, 131072
v_add_u32 v19, s23, v19
ds_write_b64 v19, v[22:23]
s_waitcnt lgkmcnt(0)
s_barrier""")
    for j in range(1, 4):
        A(f"v_xor_b32 v20, {j << 8}, v19\nds_read_b64 v[{22+2*j}:{23+2*j}], v20")
    A(f"""s_lshl_b32 s23, s17, 11
s_add_u32 s23, s23, {HF}
s_mul_i32 s24, s16, {4*112*1024}
s_add_u32 s23, s23, s24""")
    for j in range(4):
        A(f"s_xor_b32 s24, s33, {j}\ns_mul_i32 s24, s24, {112*1024}\ns_add_u32 s{26+j}, s23, s24")
    A("s_waitcnt vmcnt(0)")
    for j in range(4):
        a0 = 128 + 16*j
        if j == 1: A("s_waitcnt lgkmcnt(0)")
        rr = 22 + 2*j
        T = 96
        for k in range(8):
            A(f"v_pk_fma_f32 v[{T+2*k}:{T+2*k+1}], v[{64+2*k}:{65+2*k}], v[{rr}:{rr+1}], v[{80+2*k}:{81+2*k}] op_sel:[0,1,0] op_sel_hi:[1,1,1] neg_lo:[0,1,0] neg_hi:[0,1,0]")
        for k in range(8):
            A(f"v_pk_fma_f32 v[{a0+2*k}:{a0+2*k+1}], v[{a0+2*k}:{a0+2*k+1}], v[{rr}:{rr+1}], v[{T+2*k}:{T+2*k+1}] op_sel_hi:[1,0,1]")
        for k in range(16):
            A(f"v_max_f32 v{a0+k}, 0, v{a0+k}")
        for k in range(8):
            A(f"v_pk_mul_f32 v[{a0+2*k}:{a0+2*k+1}], v[{a0+2*k}:{a0+2*k+1}], v[{a0+2*k}:{a0+2*k+1}]")
        O = 32 + 8*j
        for k in range(8):
            A(f"v_cvt_pk_bf16_f32 v{O+k}, v{a0+2*k}, v{a0+2*k+1}")
        A(f"buffer_store_dwordx4 v[{O}:{O+3}], v9, s[8:11], s{26+j} offen")
        A(f"buffer_store_dwordx4 v[{O+4}:{O+7}], v9, s[8:11], s{26+j} offen offset:1024")
    A("L_g1_end:\ns_endpgm")

G2_RED = 0
G2_RES = 49152
G2_OUT = G2_RES + 8192
G2_OSTR = 144
G2_LDS = G2_OUT + 64*G2_OSTR

def gen_g2():
    for nm, xin, fin in (("g2a_kernel", XT1, 0), ("g2b_kernel", XT3, 1)):
        entry(nm)
        A(f"s_mov_b32 s20, {xin}\ns_mov_b32 s40, {fin}")
        if nm == "g2a_kernel": A("s_branch L_g2_body")
    A(f"""L_g2_body:
s_cmp_ge_u32 s2, 256
s_cbranch_scc1 L_g2_end
s_load_dwordx2 s[4:5], s[0:1], 128
s_load_dwordx2 s[6:7], s[0:1], 112
v_and_b32 v1, 63, v0
v_lshrrev_b32 v2, 6, v0
v_lshlrev_b32 v9, 4, v1
v_lshrrev_b32 v3, 5, v1
v_readfirstlane_b32 s33, v2
v_lshrrev_b32 v8, 3, v1
v_lshlrev_b32 v8, 12, v8
v_and_b32 v7, 7, v1
v_lshl_add_u32 v8, v7, 4, v8
v_lshlrev_b32 v18, 4, v3
s_and_b32 s16, s2, 7
s_lshr_b32 s17, s2, 3
s_and_b32 s18, s17, 3
s_lshl_b32 s16, s16, 2
s_add_u32 s16, s16, s18
s_lshr_b32 s17, s17, 2
s_mul_i32 s18, s33, {28*1024}
s_mul_i32 s24, s16, {2*112*1024}
s_add_u32 s24, s24, s18
s_add_u32 s24, s24, {HF}
s_add_u32 s25, s24, {112*1024}
s_mul_i32 s26, s17, {2*112*1024}
s_add_u32 s26, s26, s18
s_add_u32 s26, s26, {W2F}
s_add_u32 s27, s26, {112*1024}
s_lshl_b32 s18, s17, 18
s_add_u32 s20, s20, s18
s_lshl_b32 s18, s16, 7
s_add_u32 s20, s20, s18
s_lshl_b32 s18, s33, 16
s_add_u32 s20, s20, s18
s_add_u32 s21, s20, 0x8000
s_lshl_b32 s22, s33, 11
s_lshr_b32 s34, s33, 1
s_and_b32 s35, s33, 1
s_lshl_b32 s23, s17, 8
s_lshl_b32 s18, s34, 7
s_add_u32 s23, s23, s18
s_add_u32 s23, s23, {B2F}
s_waitcnt lgkmcnt(0)""")
    srd(8, 4, WS_USED)
    def loads(ks):
        slot = ks % 14
        regs = []
        for t, sreg in enumerate((26, 24, 25, 27)):
            r = 16*slot + 4*t
            A(f"buffer_load_dwordx4 a[{r}:{r+3}], v9, s[8:11], s{sreg} offen offset:{1024*(ks%4)}")
        if ks % 4 == 3:
            for sreg in (24, 25, 26, 27): A(f"s_add_u32 s{sreg}, s{sreg}, 4096")
    loads(0); loads(1)
    A(f"""s_add_u32 m0, s22, {G2_RES}
s_nop 0
buffer_load_dwordx4 v8, s[8:11], s20 offen lds
s_add_u32 m0, s22, {G2_RES + 1024}
s_nop 0
buffer_load_dwordx4 v8, s[8:11], s21 offen lds""")
    for q in range(4):
        A(f"buffer_load_dwordx4 v[{20+4*q}:{23+4*q}], v18, s[8:11], s23 offen offset:{32*q}")
    for ks in range(2, 14): loads(ks)
    for ks in range(28):
        slot = ks % 14
        r = 16*slot
        later = min(13, 27 - ks) * 4 + (6 if ks < 2 else 0)
        A(f"s_waitcnt vmcnt({later + 2})")
        def mf(dq, lq):
            acc = 64 + 16*(2*dq+lq)
            c = "0" if ks == 0 else f"v[{acc}:{acc+15}]"
            ra = r + (0 if dq == 0 else 12); rb = r + (4 if lq == 0 else 8)
            A(f"v_mfma_f32_32x32x16_bf16 v[{acc}:{acc+15}], a[{ra}:{ra+3}], a[{rb}:{rb+3}], {c}")
        mf(0, 0)
        A(f"s_waitcnt vmcnt({later + 1})")
        mf(0, 1)
        A(f"s_waitcnt vmcnt({later})")
        mf(1, 0); mf(1, 1)
        if ks + 14 < 28: loads(ks + 14)
    A("s_nop 7")
    for q in range(4):
        A(f"""s_cmp_eq_u32 s33, {q}
s_cbranch_scc1 L_g2_skip{q}
s_sub_u32 s18, s33, {q+1}
s_and_b32 s18, s18, 3
s_lshl_b32 s18, s18, 12
v_add_u32 v10, s18, v9""")
        for k in range(4):
            A(f"ds_write_b128 v10, v[{64+16*q+4*k}:{67+16*q+4*k}] offset:{G2_RED + q*12288 + 1024*k}")
        if q != 0:
            A(f"s_branch L_g2_next{q}\nL_g2_skip{q}:")
            for k in range(0, 16, 2): A(f"v_mov_b64 v[{48+k}:{49+k}], v[{64+16*q+k}:{65+16*q+k}]")
            A(f"L_g2_next{q}:")
        else:
            A(f"s_branch L_g2_next{q}\nL_g2_skip{q}:")
            for k in range(0, 16, 2): A(f"v_mov_b64 v[{48+k}:{49+k}], v[{64+k}:{65+k}]")
            A(f"L_g2_next{q}:")
    A(f"""v_lshrrev_b32 v4, 4, v1
v_and_b32 v5, 15, v1
v_lshrrev_b32 v6, 2, v5
v_and_b32 v7, 3, v1
v_lshl_add_u32 v11, v3, 2, v6
v_lshlrev_b32 v11, 7, v11
v_and_b32 v12, 1, v4
v_lshl_add_u32 v11, v12, 5, v11
v_lshl_add_u32 v11, v7, 3, v11
s_lshl_b32 s18, s34, 12
s_lshl_b32 s19, s35, 6
s_add_u32 s18, s18, s19
v_add_u32 v11, s18, v11
s_mul_i32 s18, s33, 12288
v_add_u32 v10, s18, v9
v_and_b32 v13, 31, v1
v_mul_u32_u24 v12, {G2_OSTR}, v13
v_lshl_add_u32 v12, v3, 3, v12
s_mul_i32 s18, s35, {32*G2_OSTR}
s_lshl_b32 s19, s34, 6
s_add_u32 s18, s18, s19
v_add_u32 v12, s18, v12
s_waitcnt lgkmcnt(0)
s_barrier""")
    for p in range(3):
        for k in range(4):
            A(f"ds_read_b128 v[{64+16*p+4*k}:{67+16*p+4*k}], v10 offset:{G2_RED + 4096*p + 1024*k}")
    for q in range(4):
        A(f"ds_read_b64_tr_b16 v[{40+2*q}:{41+2*q}], v11 offset:{G2_RES + 1024*q}")
    for k in range(8):
        A(f"v_pk_add_f32 v[{48+2*k}:{49+2*k}], v[{48+2*k}:{49+2*k}], v[{20+2*k}:{21+2*k}]")
    for p in range(3):
        A(f"s_waitcnt lgkmcnt({12-4*p})")
        for k in range(8):
            A(f"v_pk_add_f32 v[{48+2*k}:{49+2*k}], v[{48+2*k}:{49+2*k}], v[{64+16*p+2*k}:{65+16*p+2*k}]")
    A("s_waitcnt lgkmcnt(0)")
    for k in range(8):
        A(f"v_lshlrev_b32 v{64+2*k}, 16, v{40+k}")
        A(f"v_and_b32 v{65+2*k}, 0xffff0000, v{40+k}")
    for k in range(8):
        A(f"v_pk_add_f32 v[{48+2*k}:{49+2*k}], v[{48+2*k}:{49+2*k}], v[{64+2*k}:{65+2*k}]")
    for k in range(8):
        A(f"v_cvt_pk_bf16_f32 v{40+k}, v{48+2*k}, v{49+2*k}")
    for q in range(4):
        A(f"ds_write_b64 v12, v[{40+2*q}:{41+2*q}] offset:{G2_OUT + 16*q}")
    A("s_cmp_eq_u32 s40, 1\ns_cbranch_scc1 L_g2_final")
    A("v_mov_b32 v16, 0\nv_mov_b32 v17, 0")
    for k in range(8):
        A(f"v_dot2c_f32_bf16 v16, 0x{ONES_BF:08x}, v{40+k}")
        A(f"v_dot2c_f32_bf16 v17, v{40+k}, v{40+k}")
    A(f"""v_permlane32_swap_b32 v16, v17
v_add_f32 v16, v16, v17
v_lshlrev_b32 v13, 2, v13
v_lshl_add_u32 v13, v3, 13, v13
s_lshl_b32 s18, s16, 8
s_lshl_b32 s19, s35, 7
s_add_u32 s18, s18, s19
s_add_u32 s18, s18, {ST2}
buffer_atomic_add_f32 v16, v13, s[8:11], s18 offen""")
    A(f"""v_lshl_add_u32 v11, v4, 3, v6
v_mul_u32_u24 v11, {G2_OSTR}, v11
v_lshl_add_u32 v11, v7, 3, v11
s_lshl_b32 s18, s33, 5
v_add_u32 v11, s18, v11
v_lshlrev_b32 v12, 12, v5
v_lshl_add_u32 v12, v4, 4, v12
s_lshl_b32 s18, s17, 18
s_lshl_b32 s19, s33, 16
s_add_u32 s18, s18, s19
s_lshl_b32 s19, s16, 7
s_add_u32 s18, s18, s19
s_add_u32 s18, s18, {XT2}
s_waitcnt lgkmcnt(0)
s_barrier""")
    for i in range(2):
        for hh in range(2):
            A(f"ds_read_b64_tr_b16 v[{48+4*i+2*hh}:{49+4*i+2*hh}], v11 offset:{G2_OUT + (32*i+4*hh)*G2_OSTR}")
    A("""s_waitcnt lgkmcnt(2)
buffer_store_dwordx4 v[48:51], v12, s[8:11], s18 offen
s_waitcnt lgkmcnt(0)
buffer_store_dwordx4 v[52:55], v12, s[8:11], s18 offen offset:64
s_endpgm""")
    A(f"""L_g2_final:
v_lshrrev_b32 v11, 3, v0
v_and_b32 v13, 7, v0
v_lshlrev_b32 v12, 10, v11
v_lshl_add_u32 v12, v13, 4, v12
v_mul_u32_u24 v11, {G2_OSTR}, v11
v_lshl_add_u32 v11, v13, 4, v11
s_lshl_b32 s18, s16, 16
s_lshl_b32 s19, s17, 7
s_add_u32 s18, s18, s19
s_add_u32 s19, s18, 0x8000""")
    srd(12, 6, 0x200000)
    A(f"""s_waitcnt lgkmcnt(0)
s_barrier
ds_read_b128 v[48:51], v11 offset:{G2_OUT}
ds_read_b128 v[52:55], v11 offset:{G2_OUT + 32*G2_OSTR}
s_waitcnt lgkmcnt(1)
buffer_store_dwordx4 v[48:51], v12, s[12:15], s18 offen
s_waitcnt lgkmcnt(0)
buffer_store_dwordx4 v[52:55], v12, s[12:15], s19 offen
L_g2_end:
s_endpgm""")

def main(out):
    hdr = open("cdna_kernels/" + NAME + ".s.ref").read().split("; Override launch")[0]
    launches = [("prep_kernel", 504, PREP_LDS), ("conv1_kernel", 256, CONV_LDS), ("g1a_kernel", 224, G1_LDS), ("g2a_kernel", 256, G2_LDS),
                ("conv2_kernel", 256, CONV_LDS), ("g1b_kernel", 224, G1_LDS), ("g2b_kernel", 256, G2_LDS)]
    for k, g, lds in launches:
        hdr += f"; @launch kernel={k} grid=({g},1,1) block=(256,1,1) lds={lds}\n"
    A.raw('.amdgcn_target "amdgcn-amd-amdhsa--gfx950"')
    A.raw(".text")
    gen_prep(); gen_conv(); gen_g1(); gen_g2()
    body = A.finish()
    desc = '.section .rodata,"a"\n'
    desc += kdesc("prep_kernel", 216, 40, 216)
    for k in ("conv1_kernel", "conv2_kernel"): desc += kdesc(k, 176, 40, 176)
    for k in ("g1a_kernel", "g1b_kernel"): desc += kdesc(k, 192 + 128, 40, 192)
    for k in ("g2a_kernel", "g2b_kernel"): desc += kdesc(k, 128 + 224, 48, 128)
    open(out, "w").write(hdr + body + desc)

if __name__ == "__main__":
    main(sys.argv[1] if len(sys.argv) > 1 else "cdna_kernels/" + NAME + ".s")
```

```python
import sys, struct
from asmlib import Asm, kdesc

NAME = "interleave_layers__ssm_conv_s4__dense_activation_squared_relu__prompt"
XT0, XT1, XT2, XT3 = 0x0, 0x200000, 0x400000, 0x600000
HF = 0x800000
HF2 = 0x1700000
W1F = 0xF00000
W2F = 0x10C0000
KR = 0x1280000
KR_CH = 8448; KR_PAR = 4224
ST0 = 0x16A0000
CS = 0x16A8000
B1F = CS + 7168
B2F = CS + 14336
ZR = 0x16B0000
ST2 = ZR
RS0 = ZR + 0x4000
RS1 = ZR + 0x8000
FC0 = ZR + 0xC000
FC1 = ZR + 0xC400
FG0 = ZR + 0xC800
FG1 = ZR + 0xCC00
FX = ZR + 0xD000
WS_USED = 0x1E40000
LOG2E = 0x3fb8aa3b
INV2PI = 0x3e22f983
ONES_BF = 0x3f803f80

A = Asm()
import os
DIAG = int(os.environ.get("DIAG", "0"))
NST = [0]
def stamp_reset(): NST[0] = 0
def stamp():
    if not DIAG: return
    n = NST[0]; NST[0] += 1
    A(f"s_memtime s[{62+2*n}:{63+2*n}]\ns_waitcnt lgkmcnt(0)")
def stamp_dump():
    if not DIAG: return
    n = NST[0]
    A(f"""s_waitcnt vmcnt(0)
s_memtime s[{62+2*n}:{63+2*n}]
s_memrealtime s[58:59]
s_load_dwordx2 s[56:57], s[0:1], 120
s_waitcnt lgkmcnt(0)
s_mul_hi_u32 s55, s2, 0x{(2**32+100)//101:08x}
s_mul_i32 s54, s55, 101
s_cmp_lg_u32 s54, s2
s_cbranch_scc1 L_sd_skip{stamp_dump.c}
s_cmp_lg_u32 s33, 0
s_cbranch_scc1 L_sd_skip{stamp_dump.c}
s_cmp_ge_u32 s55, 4
s_cbranch_scc1 L_sd_skip{stamp_dump.c}
s_lshl_b32 s55, s55, 6
v_mov_b32 v2, s55
v_mov_b32 v3, s58
global_store_dword v2, v3, s[56:57] offset:60""")
    for i in range(n + 1):
        if i == 0:
            A(f"v_mov_b32 v3, s62")
        else:
            A(f"s_sub_u32 s54, s{62+2*i}, s62\nv_mov_b32 v3, s54")
        A(f"global_store_dword v2, v3, s[56:57] offset:{4*i}")
    A(f"s_waitcnt vmcnt(0)\nL_sd_skip{stamp_dump.c}:")
    stamp_dump.c += 1
stamp_dump.c = 0
def f2u(f): return struct.unpack('<I', struct.pack('<f', f))[0]

def srd(base, lo, size):
    A(f"""s_mov_b32 s{base}, s{lo}
s_mov_b32 s{base+1}, s{lo+1}
s_mov_b32 s{base+2}, {size}
s_mov_b32 s{base+3}, 0x00020000""")

def entry(name):
    A(f""".globl {name}
.p2align 8
.type {name},@function
{name}:""")

def cmul(d, a, b):
    assert d != a and d != b
    A(f"v_pk_mul_f32 v[{d}:{d+1}], v[{a}:{a+1}], v[{b}:{b+1}] op_sel:[0,0] op_sel_hi:[0,1]")
    return lambda: A(f"v_pk_fma_f32 v[{d}:{d+1}], v[{a}:{a+1}], v[{b}:{b+1}], v[{d}:{d+1}] op_sel:[1,1,0] op_sel_hi:[1,0,1] neg_lo:[1,0,0]")

def cmuls(lst):
    fs = [cmul(*t) for t in lst]
    for f in fs: f()

PT_ROW = 528
PT_P = 21 * PT_ROW
PT_CH = 53 * PT_ROW
KF_BASE = 2 * PT_CH + 32
KF_CH = 4640
PREP_LDS = KF_BASE + 2 * KF_CH

def gen_prep():
    entry("prep_kernel")
    A("""s_cmp_ge_u32 s2, 504
s_cbranch_scc1 L_prep_end
s_load_dwordx2 s[4:5], s[0:1], 128
v_and_b32 v1, 63, v0
v_lshrrev_b32 v2, 6, v0
s_cmp_ge_u32 s2, 256
s_cbranch_scc1 L_prep_other""")
    stamp_reset(); stamp()
    if DIAG: A("v_readfirstlane_b32 s33, v2")
    A("""s_load_dwordx16 s[16:31], s[0:1], 0
s_lshl_b32 s3, s2, 9
v_lshlrev_b32 v3, 1, v0
v_add_u32 v3, s3, v3
v_lshrrev_b32 v4, 7, v0
s_lshl_b32 s6, s2, 2
v_lshl_add_u32 v5, v4, 1, s6
s_waitcnt lgkmcnt(0)
global_load_ushort v16, v5, s[30:31]
global_load_ushort v10, v3, s[18:19]
global_load_ushort v11, v3, s[20:21]
global_load_ushort v12, v3, s[22:23]
global_load_ushort v13, v3, s[24:25]
global_load_ushort v14, v3, s[26:27]
global_load_ushort v15, v3, s[28:29]""")
    srd(8, 4, WS_USED)
    A(f"""v_lshlrev_b32 v6, 3, v0
v_sub_u32 v6, 2047, v6
v_cvt_f32_i32 v6, v6""")
    for i in range(9):
        A("v_mov_b32 v100, v6" if i == 0 else f"v_subrev_f32 v{100+i}, 0x{f2u(float(i)):08x}, v6")
    for i in range(0, 10, 2):
        A(f"v_cvt_pk_bf16_f32 v{110+i//2}, v{100+i}, v{100+min(i+1,8)}")
    for i in range(9):
        if i % 2 == 0: A(f"v_lshlrev_b32 v{100+i}, 16, v{110+i//2}")
        else: A(f"v_and_b32 v{100+i}, 0xffff0000, v{110+i//2}")
    for i in range(9):
        A(f"v_cvt_i32_f32 v{100+i}, v{100+i}")
    A(f"s_mov_b32 s7, {KF_BASE}")
    for i in range(9):
        A(f"v_lshl_add_u32 v{100+i}, v{100+i}, 1, s7")
    A(f"""v_and_b32 v7, 127, v0
v_mul_u32_u24 v9, {PT_CH}, v4
v_lshl_add_u32 v9, v7, 2, v9
v_mul_u32_u24 v8, {KF_CH}, v4
v_mov_b32 v7, 0
ds_write_b32 v8, v7 offset:{KF_BASE-4}
s_waitcnt vmcnt(0)""")
    stamp()
    for r in range(10, 17):
        A(f"v_lshlrev_b32 v{r}, 16, v{r}")
    A(f"""v_mul_f32 v16, 0x{LOG2E:08x}, v16
v_exp_f32 v16, v16
v_cvt_pk_bf16_f32 v16, v16, v16
v_lshlrev_b32 v16, 16, v16
v_mul_f32 v10, v16, v10
v_mul_f32 v11, v16, v11
v_mul_f32 v12, v16, v12
v_mul_f32 v13, v16, v13
v_mul_f32 v10, 0x{LOG2E:08x}, v10
v_mul_f32 v11, 0x{INV2PI:08x}, v11""")
    A("""v_mul_f32 v26, 0x41000000, v10
v_mul_f32 v27, 0x43800000, v10
v_mul_f32 v28, 0x41000000, v11
v_mul_f32 v29, 0x43800000, v11
v_fract_f32 v11, v11
v_fract_f32 v28, v28
v_fract_f32 v29, v29
v_exp_f32 v10, v10
v_exp_f32 v26, v26
v_exp_f32 v27, v27
v_cos_f32 v20, v11
v_sin_f32 v21, v11
v_cos_f32 v22, v28
v_sin_f32 v23, v28
v_cos_f32 v24, v29
v_sin_f32 v25, v29""")
    cmuls([(30, 14, 12)])
    A("""v_pk_mul_f32 v[20:21], v[20:21], v[10:11] op_sel_hi:[1,0]
v_pk_mul_f32 v[22:23], v[22:23], v[26:27] op_sel_hi:[1,0]
v_pk_mul_f32 v[24:25], v[24:25], v[26:27] op_sel:[0,1] op_sel_hi:[1,1]""")
    tmpc = [0]
    def wP(row, r):
        t = 90 + (tmpc[0] % 8); tmpc[0] += 1
        A(f"v_cvt_pk_bf16_f32 v{t}, v{r}, -v{r+1}")
        A(f"ds_write_b32 v9, v{t} offset:{row*PT_ROW}")
    def wQ(j, r):
        t = 90 + (tmpc[0] % 8); tmpc[0] += 1
        A(f"v_cvt_pk_bf16_f32 v{t}, v{r}, v{r+1}")
        A(f"ds_write_b32 v9, v{t} offset:{PT_P + j*PT_ROW}")
    prow = {}
    for g in range(4):
        prow[g] = 4*g; prow[4+g] = 4*g+1; prow[256+2*g] = 4*g+2; prow[1280+256*g] = 4*g+3
    prow[512] = 16; prow[516] = 17; prow[768] = 18; prow[772] = 19; prow[1024] = 20
    A(f"v_mov_b32 v90, 0x00003f80\nds_write_b32 v9, v90 offset:{PT_P}")
    tmpc[0] = 1
    wP(prow[0], 30); wQ(1, 22)
    cmuls([(32, 30, 20), (40, 30, 24), (46, 20, 20), (56, 22, 22)])
    wP(prow[1], 32); wP(prow[256], 40); wQ(2, 56)
    cmuls([(34, 32, 20), (42, 40, 24), (48, 46, 46), (58, 56, 22), (68, 56, 56), (70, 40, 46)])
    wP(prow[2], 34); wP(prow[512], 42); wQ(3, 58); wQ(4, 68); wP(prow[258], 70)
    cmuls([(32, 34, 20), (44, 42, 24), (50, 46, 48), (62, 22, 68), (64, 56, 68), (66, 58, 68), (70, 40, 48), (72, 42, 48)])
    wP(prow[3], 32); wP(prow[768], 44); wQ(5, 62); wQ(6, 64); wQ(7, 66); wP(prow[260], 70); wP(prow[516], 72)
    cmuls([(34, 32, 20), (36, 44, 24), (70, 40, 50), (72, 44, 48), (52, 68, 68), (54, 62, 68), (56, 64, 68), (58, 66, 68)])
    wP(prow[4], 34); wP(prow[1024], 36); wP(prow[262], 70); wP(prow[772], 72)
    for k in range(4): wQ(8+k, 52+2*k)
    pc, gc, qc = 34, 36, 52
    for step in range(5):
        lst = []
        pn = 32 if pc == 34 else 34; gn = 38 if gc == 36 else 36; qn = 60 if qc == 52 else 52
        if step < 3: lst.append((pn, pc, 20))
        if step < 4: lst.append((gn, gc, 24))
        for k in range(4): lst.append((qn+2*k, qc+2*k, 68))
        cmuls(lst)
        if step < 3: wP(prow[5+step], pn); pc = pn
        if step < 4: wP(prow[1280+256*step], gn); gc = gn
        for k in range(4): wQ(12+4*step+k, qn+2*k)
        qc = qn
    A(f"""v_and_b32 v3, 15, v1
v_lshrrev_b32 v5, 4, v1
v_lshrrev_b32 v6, 1, v2
v_and_b32 v7, 1, v2
v_mul_u32_u24 v8, {PT_CH}, v6
v_lshl_add_u32 v8, v5, 4, v8
v_lshrrev_b32 v10, 2, v3
v_lshlrev_b32 v10, 1, v10
v_and_b32 v11, 1, v3
v_add_u32 v10, v10, v11
v_min_u32 v10, 4, v10
v_add_u32 v10, 16, v10
v_mul_u32_u24 v10, {PT_ROW}, v10
v_add_u32 v10, v10, v8
v_lshl_add_u32 v11, v7, 4, v3
v_mul_u32_u24 v12, {PT_ROW}, v11
v_add_u32 v12, v12, v8
v_mul_u32_u24 v13, {PT_ROW}, v3
v_add_u32 v13, v13, v8
v_mul_u32_u24 v14, {KF_CH}, v6
v_lshl_add_u32 v14, v11, 4, v14
v_lshl_add_u32 v15, v5, 1, v14
v_lshl_add_u32 v16, v5, 2, v14
v_lshl_add_u32 v17, v5, 9, v14
s_waitcnt lgkmcnt(0)
s_barrier""")
    stamp()
    for ks in range(8):
        A(f"ds_read_b128 v[{120+12*ks}:{123+12*ks}], v13 offset:{64*ks}")
        A(f"ds_read_b128 v[{124+12*ks}:{127+12*ks}], v12 offset:{PT_P+64*ks}")
        A(f"ds_read_b128 v[{128+12*ks}:{131+12*ks}], v10 offset:{64*ks}")
    for ks in range(8):
        rem = 3*(7-ks)
        A(f"s_waitcnt lgkmcnt({min(rem,15)})")
        c0 = "0" if ks == 0 else "v[20:23]"; c1 = "0" if ks == 0 else "v[24:27]"
        A(f"v_mfma_f32_16x16x32_bf16 v[20:23], v[{120+12*ks}:{123+12*ks}], v[{124+12*ks}:{127+12*ks}], {c0}")
        A(f"v_mfma_f32_16x16x32_bf16 v[24:27], v[{128+12*ks}:{131+12*ks}], v[{124+12*ks}:{127+12*ks}], {c1}")
    A(f"""v_cvt_pk_bf16_f32 v28, v20, v21
v_cvt_pk_bf16_f32 v29, v22, v23
v_cvt_pk_bf16_f32 v30, v24, v25
ds_write_b16 v15, v28 offset:{KF_BASE}
ds_write_b16_d16_hi v15, v28 offset:{KF_BASE+8}
ds_write_b16 v16, v29 offset:{KF_BASE+512}
ds_write_b16_d16_hi v17, v29 offset:{KF_BASE+2560}
s_mov_b32 exec_hi, 0xffff
ds_write_b16 v17, v30 offset:{KF_BASE+1024}
s_mov_b32 exec_hi, 0
ds_write_b16_d16_hi v17, v30 offset:{KF_BASE+1032}
s_mov_b64 exec, -1
s_waitcnt lgkmcnt(0)
s_barrier""")
    stamp()
    for ch in range(2):
        for i in range(9):
            A(f"ds_read_u16 v{40+10*ch+i}, v{100+i} offset:{ch*KF_CH}")
    A(f"""s_mul_i32 s6, s2, {2*KR_CH}
s_add_u32 s6, s6, {KR}
s_add_u32 s7, s6, {KR_PAR}
s_add_u32 s12, s6, {KR_CH}
s_add_u32 s13, s7, {KR_CH}
v_lshlrev_b32 v3, 4, v0""")
    for ch in range(2):
        A(f"s_waitcnt lgkmcnt({9 if ch == 0 else 0})")
        for par in range(2):
            o = 68 + 8*ch + 4*par
            for k in range(4):
                A(f"v_lshl_or_b32 v{o+k}, v{40+10*ch+2*k+par+1}, 16, v{40+10*ch+2*k+par}")
            A(f"buffer_store_dwordx4 v[{o}:{o+3}], v3, s[8:11], s{[6,7,12,13][2*ch+par]} offen")
    stamp_dump()
    A(f"""v_mul_u32_u24 v3, {KR_PAR}, v0
v_add_u32 v3, 4096, v3
v_mov_b32 v64, 0
v_mov_b32 v65, 0
v_mov_b32 v66, 0
v_mov_b32 v67, 0
v_cmp_gt_u32 vcc, 4, v0
s_and_saveexec_b64 s[14:15], vcc
s_cbranch_execz L_prep_end
buffer_store_dwordx4 v[64:67], v3, s[8:11], s6 offen
s_endpgm""")
    A("""L_prep_other:
v_readfirstlane_b32 s33, v2
v_lshrrev_b32 v4, 4, v1
v_and_b32 v5, 15, v1
v_lshrrev_b32 v6, 2, v5
v_and_b32 v7, 3, v1
s_cmp_ge_u32 s2, 384
s_cbranch_scc1 L_prep_w""")
    A(f"""s_load_dwordx2 s[6:7], s[0:1], 0
s_sub_u32 s3, s2, 256
s_lshr_b32 s16, s3, 2
s_and_b32 s17, s3, 3
v_lshlrev_b32 v8, 2, v4
v_xor_b32 v8, v8, v5
v_lshlrev_b32 v8, 4, v8
v_lshl_add_u32 v8, v4, 10, v8
v_lshlrev_b32 v9, 4, v1
s_lshl_b32 s18, s16, 16
s_lshl_b32 s19, s33, 14
s_add_u32 s18, s18, s19
s_lshl_b32 s19, s17, 8
s_add_u32 s18, s18, s19
s_lshl_b32 s19, s33, 12
s_lshl_b32 s20, s3, 14
s_add_u32 s20, s20, s19
s_waitcnt lgkmcnt(0)""")
    srd(8, 4, WS_USED); srd(12, 6, 0x200000)
    for i in range(4):
        A(f"""s_add_u32 m0, s19, {1024*i}
s_add_u32 s21, s18, {4096*i}
buffer_load_dwordx4 v8, s[12:15], s21 offen lds""")
    for i in range(4):
        A(f"buffer_load_dwordx4 v[{20+4*i}:{23+4*i}], v9, s[12:15], s20 offen offset:{1024*i}")
    A(f"""v_mov_b32 v48, 0
v_mov_b32 v49, 0
v_mov_b32 v50, 0
v_mov_b32 v51, 0
s_lshl_b32 s21, s3, 9
s_add_u32 s21, s21, {ZR}
v_lshlrev_b32 v11, 4, v0
v_cmp_gt_u32 vcc, 32, v0
s_and_saveexec_b64 s[22:23], vcc
s_cbranch_execz L_prep_x1
buffer_store_dwordx4 v[48:51], v11, s[8:11], s21 offen
L_prep_x1:
s_mov_b64 exec, s[22:23]""")
    A(f"""v_lshl_add_u32 v11, v4, 3, v6
v_lshlrev_b32 v11, 8, v11
v_xor_b32 v12, s33, v6
v_lshl_add_u32 v11, v12, 6, v11
v_lshl_add_u32 v11, v7, 3, v11
v_lshlrev_b32 v12, 8, v5
v_lshl_add_u32 v12, v4, 4, v12
s_lshl_b32 s21, s17, 15
s_lshl_b32 s22, s33, 13
s_add_u32 s21, s21, s22
s_lshr_b32 s22, s16, 1
s_lshl_b32 s22, s22, 17
s_add_u32 s21, s21, s22
s_and_b32 s22, s16, 1
s_lshl_b32 s22, s22, 7
s_add_u32 s21, s21, s22
s_add_u32 s21, s21, {XT0}
s_add_u32 s22, s21, 0x1000""")
    for i in range(8): A(f"v_mov_b32 v{40+i}, 0")
    A("s_waitcnt vmcnt(0)\ns_barrier")
    for dd in range(2):
        for lh in range(2):
            for hh in range(2):
                d = 60 + 8*dd + 4*lh + 2*hh
                A(f"ds_read_b64_tr_b16 v[{d}:{d+1}], v11 offset:{(32*lh+4*hh)*256 + 32*dd}")
    for i in range(4):
        for k in range(4):
            A(f"v_dot2c_f32_bf16 v{40+2*i}, 0x{ONES_BF:08x}, v{20+4*i+k}")
            A(f"v_dot2c_f32_bf16 v{41+2*i}, v{20+4*i+k}, v{20+4*i+k}")
    A("s_waitcnt lgkmcnt(0)")
    for dd in range(2):
        for lh in range(2):
            d = 60 + 8*dd + 4*lh
            A(f"buffer_store_dwordx4 v[{d}:{d+3}], v12, s[8:11], s{21+dd} offen offset:{64*lh}")
    for i in range(4):
        A(f"v_permlane32_swap_b32 v{40+2*i}, v{41+2*i}")
    for i in range(4):
        A(f"v_add_f32 v{40+2*i}, v{40+2*i}, v{41+2*i}")
    A("""v_permlane16_swap_b32 v40, v42
v_permlane16_swap_b32 v44, v46
v_add_f32 v40, v40, v42
v_add_f32 v44, v44, v46""")
    for sh in (8, 4, 2, 1):
        A(f"v_add_f32_dpp v40, v40, v40 row_ror:{sh} row_mask:0xf bank_mask:0xf")
        A(f"v_add_f32_dpp v44, v44, v44 row_ror:{sh} row_mask:0xf bank_mask:0xf")
    A(f"""v_and_b32 v13, 1, v4
v_lshlrev_b32 v13, 2, v13
v_lshrrev_b32 v14, 1, v4
v_lshl_add_u32 v13, v14, 13, v13
s_lshl_b32 s21, s3, 6
s_lshl_b32 s22, s33, 4
s_add_u32 s21, s21, s22
s_add_u32 s21, s21, {ST0}
v_cmp_eq_u32 vcc, 0, v5
s_and_saveexec_b64 s[22:23], vcc
s_cbranch_execz L_prep_end
buffer_store_dword v40, v13, s[8:11], s21 offen
buffer_store_dword v44, v13, s[8:11], s21 offen offset:8
s_endpgm""")
    A(f"""L_prep_w:
s_load_dwordx8 s[24:31], s[0:1], 80
v_lshrrev_b32 v8, 2, v1
v_lshlrev_b32 v9, 4, v1
v_lshrrev_b32 v10, 1, v4
v_and_b32 v11, 1, v4
v_lshlrev_b32 v11, 5, v11
v_lshl_add_u32 v11, v7, 3, v11
v_lshl_add_u32 v11, v6, 6, v11
s_lshl_b32 s19, s33, 13
v_add_u32 v11, s19, v11
s_cmp_ge_u32 s2, 440
s_cbranch_scc1 L_prep_w2""")
    A(f"""s_sub_u32 s3, s2, 384
v_mul_u32_u24 v8, 3584, v8
v_lshl_add_u32 v8, v7, 4, v8
v_lshl_add_u32 v11, v10, 9, v11
s_mul_i32 s18, s33, {128*3584}
s_lshl_b32 s20, s3, 6
s_add_u32 s18, s18, s20
s_lshl_b32 s21, s3, 15
s_add_u32 s21, s21, s19
s_add_u32 s21, s21, {W1F}
s_add_u32 s22, s21, 4096
v_lshlrev_b32 v12, 1, v1
v_mov_b32 v40, 0
s_waitcnt lgkmcnt(0)""")
    srd(8, 4, WS_USED); srd(12, 24, 512*3584)
    A("v_add_u32 v12, s20, v12\nv_min_u32 v12, 3582, v12\nglobal_load_ushort v13, v12, s[26:27]")
    for i in range(8):
        A(f"""s_add_u32 m0, s19, {1024*i}
s_add_u32 s23, s18, {16*3584*i}
buffer_load_dwordx4 v8, s[12:15], s23 offen lds""")
    A("s_waitcnt vmcnt(0)")
    for i in range(8):
        for hh in range(2):
            d = 48 + 4*i + 2*hh
            A(f"ds_read_b64_tr_b16 v[{d}:{d+1}], v11 offset:{1024*i + 256*hh}")
    for i in range(8):
        A(f"s_waitcnt lgkmcnt({14-2*i})")
        A(f"buffer_store_dwordx4 v[{48+4*i}:{51+4*i}], v9, s[8:11], s{21 + i//4} offen offset:{1024*(i%4)}")
        for k in range(4):
            A(f"v_dot2c_f32_bf16 v40, 0x{ONES_BF:08x}, v{48+4*i+k}")
    A(f"""v_mov_b32 v41, v40
v_permlane32_swap_b32 v40, v41
v_add_f32 v40, v40, v41
v_and_b32 v14, 31, v1
v_lshlrev_b32 v14, 2, v14
s_lshl_b32 s23, s33, 7
v_add_u32 v15, s23, v14
ds_write_b32 v15, v40 offset:32768
s_waitcnt lgkmcnt(0)
s_barrier
s_cmp_lg_u32 s33, 0
s_cbranch_scc1 L_prep_end
ds_read_b32 v42, v14 offset:32768
ds_read_b32 v43, v14 offset:32896
ds_read_b32 v44, v14 offset:33024
ds_read_b32 v45, v14 offset:33152
s_lshl_b32 s23, s3, 7
s_add_u32 s23, s23, {CS}
s_add_u32 s24, s23, {B1F-CS}
v_lshlrev_b32 v13, 16, v13
s_waitcnt lgkmcnt(0)
v_add_f32 v42, v42, v43
v_add_f32 v44, v44, v45
v_add_f32 v42, v42, v44
s_mov_b32 exec_hi, 0
buffer_store_dword v42, v14, s[8:11], s23 offen
buffer_store_dword v13, v14, s[8:11], s24 offen
s_endpgm""")
    A(f"""L_prep_w2:
s_sub_u32 s3, s2, 440
s_lshr_b32 s16, s3, 2
s_and_b32 s17, s3, 3
v_lshlrev_b32 v8, 10, v8
v_lshl_add_u32 v8, v7, 4, v8
v_lshl_add_u32 v11, v10, 8, v11
s_mul_i32 s18, s17, {448*1024}
s_mul_i32 s20, s33, {112*1024}
s_add_u32 s18, s18, s20
s_lshl_b32 s20, s16, 6
s_add_u32 s18, s18, s20
s_mul_i32 s21, s16, {112*1024}
s_mul_i32 s22, s17, {28*1024}
s_add_u32 s21, s21, s22
s_mul_i32 s22, s33, {7*1024}
s_add_u32 s21, s21, s22
s_add_u32 s21, s21, {W2F}
s_add_u32 s22, s21, 4096
v_lshlrev_b32 v12, 1, v1
v_add_u32 v12, s20, v12
v_min_u32 v12, 1022, v12
s_waitcnt lgkmcnt(0)""")
    srd(8, 4, WS_USED); srd(12, 28, 1792*1024)
    A("global_load_ushort v13, v12, s[30:31]")
    for i in range(7):
        A(f"""s_add_u32 m0, s19, {1024*i}
s_add_u32 s23, s18, {16*1024*i}
buffer_load_dwordx4 v8, s[12:15], s23 offen lds""")
    A("s_waitcnt vmcnt(0)")
    for i in range(7):
        for hh in range(2):
            d = 48 + 4*i + 2*hh
            A(f"ds_read_b64_tr_b16 v[{d}:{d+1}], v11 offset:{1024*i + 512*hh}")
    for i in range(7):
        A(f"s_waitcnt lgkmcnt({12-2*i})")
        A(f"buffer_store_dwordx4 v[{48+4*i}:{51+4*i}], v9, s[8:11], s{21 + i//4} offen offset:{1024*(i%4)}")
    A(f"""s_or_b32 s23, s17, s33
s_cmp_lg_u32 s23, 0
s_cbranch_scc1 L_prep_end
v_lshlrev_b32 v13, 16, v13
v_lshlrev_b32 v14, 2, v1
s_lshl_b32 s23, s16, 7
s_add_u32 s23, s23, {B2F}
s_mov_b32 exec_hi, 0
buffer_store_dword v13, v14, s[8:11], s23 offen
L_prep_end:
s_endpgm""")

CV_KCOPY = 4160
CV_KCH = 8 * CV_KCOPY
CV_U = 2 * CV_KCH
CV_UCH = 96 * 80
CV_X = CV_U + 2 * CV_UCH
CV_XCH = 64 * 80
CV_EX = CV_X + 2 * CV_XCH
G2_RED = 0
G2_RES = 49152
G2_OUT = G2_RES + 8192
G2_OSTR = 144
MEGA_LDS = 131072 + 1024
SPIN_MAX = 200000
lblc = [0]
def lbl(p):
    lblc[0] += 1
    return f"L_{p}_{lblc[0]}"

def rnd_pair(dst_lo, dst_hi, a, b, tmp):
    A(f"v_cvt_pk_bf16_f32 v{tmp}, v{a}, v{b}")
    A(f"v_lshlrev_b32 v{dst_lo}, 16, v{tmp}")
    A(f"v_and_b32 v{dst_hi}, 0xffff0000, v{tmp}")

def w2reg(n):
    return f"a[{128+4*n}:{131+4*n}]" if n < 32 else f"v[{160+4*(n-32)}:{163+4*(n-32)}]"

def w2_prefetch(ks_lo, ks_hi):
    for ks in range(ks_lo, ks_hi):
        if ks == ks_lo or ks % 4 == 0:
            A(f"s_add_u32 s18, s26, {4096*(ks//4)}\ns_add_u32 s19, s27, {4096*(ks//4)}")
        A(f"buffer_load_dwordx4 {w2reg(2*ks)}, v8, s[8:11], s18 offen offset:{1024*(ks%4)}")
        A(f"buffer_load_dwordx4 {w2reg(2*ks+1)}, v8, s[8:11], s19 offen offset:{1024*(ks%4)}")

def k_dma():
    A(f"""s_lshl_b32 s18, s2, 1
s_add_u32 s18, s18, s25
s_mul_i32 s18, s18, {KR_CH}
s_add_u32 s18, s18, {KR}
s_lshl_b32 s19, s28, 3
s_sub_u32 s18, s18, s19
s_mul_i32 s29, s25, {CV_KCH}
s_mul_i32 s19, s28, {4*CV_KCOPY}
s_add_u32 s29, s29, s19""")
    for j in range(4):
        goff = 2*(7-j) if j % 2 else KR_PAR + 2*(6-j)
        A(f"s_add_u32 m0, s29, {j*CV_KCOPY}\ns_add_u32 s30, s18, {goff}")
        for i in range(4):
            A(f"buffer_load_dwordx4 v8, s[8:11], s30 offen offset:{1024*i} lds")

def publish(flag_sreg):
    l = lbl("pub")
    A(f"""s_waitcnt vmcnt(0)
s_barrier
s_cmp_lg_u32 s33, 0
s_cbranch_scc1 {l}
v_mov_b32 v2, 0
v_mov_b32 v3, 1
s_mov_b64 exec, 1
buffer_store_dword v3, v2, s[8:11], s{flag_sreg} offen sc1
s_mov_b64 exec, -1
{l}:""")

def poll_all(flag_sreg):
    l = lbl("poll"); d = lbl("polld")
    A(f"""s_cmp_lg_u32 s33, 0
s_cbranch_scc1 {d}
s_mov_b32 s18, {SPIN_MAX}
{l}:
buffer_load_dwordx4 v[4:7], v8, s[8:11], s{flag_sreg} offen sc1
s_waitcnt vmcnt(0)
v_and_b32 v4, v4, v5
v_and_b32 v6, v6, v7
v_and_b32 v4, v4, v6
v_cmp_ne_u32 vcc, 0, v4
s_cmp_eq_u64 vcc, -1
s_cbranch_scc1 {d}
s_sub_u32 s18, s18, 1
s_cmp_lg_u32 s18, 0
s_cbranch_scc1 {l}
{d}:
s_barrier""")


DIAGB = 0x1E00000
MST = [0]
def mstamp():
    if not DIAG: return
    n = MST[0]; MST[0] += 1
    assert n < 40
    A(f"s_memrealtime s[54:55]\ns_waitcnt lgkmcnt(0)\ns_mov_b32 s{56+n}, s54")
def mdump():
    if not DIAG: return
    n = MST[0]; l = lbl("dump")
    A(f"""s_cmp_lg_u32 s33, 0
s_cbranch_scc1 {l}
s_memrealtime s[54:55]
s_lshl_b32 s18, s2, 1
s_add_u32 s18, s18, s40
s_lshl_b32 s18, s18, 8
s_add_u32 s18, s18, {DIAGB}
v_mov_b32 v2, 0
s_waitcnt lgkmcnt(0)
v_mov_b32 v3, s54
buffer_store_dword v3, v2, s[8:11], s18 offen offset:252""")
    for i in range(n):
        A(f"v_mov_b32 v3, s{56+i}\nbuffer_store_dword v3, v2, s[8:11], s18 offen offset:{4*i}")
    A(f"s_waitcnt vmcnt(0)\n{l}:")

def conv_phase():
    A(f"""v_lshlrev_b32 v4, 5, v0
v_lshrrev_b32 v6, 4, v0
v_and_b32 v7, 15, v0
v_lshlrev_b32 v6, 17, v6
v_lshl_add_u32 v6, v7, 4, v6
s_lshl_b32 s3, s2, 9
s_add_u32 s20, s41, s3
s_add_u32 s22, s43, s3
s_add_u32 s24, s42, 8192
buffer_load_dwordx4 v[20:23], v4, s[8:11], s42 offen sc1
buffer_load_dwordx4 v[24:27], v4, s[8:11], s42 offen offset:16 sc1
buffer_load_dwordx4 v[28:31], v4, s[8:11], s24 offen sc1
buffer_load_dwordx4 v[32:35], v4, s[8:11], s24 offen offset:16 sc1
buffer_load_dwordx4 v[12:15], v6, s[8:11], s20 offen sc1
buffer_load_dwordx4 v[16:19], v6, s[8:11], s20 offen offset:256 sc1""")
    l0 = lbl("cvk"); l1 = lbl("cvk")
    A(f"s_cmp_lg_u32 s40, 0\ns_cbranch_scc1 {l0}")
    k_dma()
    A(f"{l0}:")
    A(f"""v_mov_b32 v36, 0
v_mov_b32 v37, 0
v_mov_b32 v38, 0
v_mov_b32 v39, 0
v_lshrrev_b32 v6, 2, v0
v_and_b32 v7, 3, v0
v_mul_u32_u24 v9, {CV_KCOPY}, v6
v_lshl_add_u32 v9, v7, 4, v9
v_mul_u32_u24 v10, 80, v6
v_lshl_add_u32 v10, v7, 4, v10
v_add_u32 v10, {CV_U + 32*80}, v10
v_lshlrev_b32 v5, 4, v0
v_add_u32 v5, {CV_U}, v5
v_cmp_gt_u32 vcc, 160, v0
s_and_saveexec_b64 s[36:37], vcc
ds_write_b128 v5, v[36:39]
ds_write_b128 v5, v[36:39] offset:{CV_UCH}
s_mov_b64 exec, s[36:37]
s_cmp_lg_u32 s33, 0
s_cbranch_scc1 {l1}
ds_write_b128 v9, v[36:39] offset:4096
{l1}:
v_and_b32 v42, 31, v1
v_lshrrev_b32 v43, 5, v1
v_and_b32 v11, 7, v42
v_mul_u32_u24 v11, {CV_KCOPY}, v11
v_lshrrev_b32 v40, 3, v42
v_sub_u32 v40, v43, v40
v_lshl_add_u32 v11, v40, 4, v11
s_mul_i32 s30, s25, {CV_KCH}
s_lshl_b32 s31, s28, 10
s_sub_u32 s30, s30, s31
s_add_u32 s30, s30, {16*255 - 32*94}
v_add_u32 v11, s30, v11
v_mul_u32_u24 v40, 80, v42
v_lshl_add_u32 v41, v43, 3, v40
v_lshl_add_u32 v40, v43, 4, v40
s_mul_i32 s30, s25, {CV_UCH}
s_mul_i32 s31, s28, {16*80}
s_sub_u32 s30, s30, s31
s_add_u32 s30, s30, {CV_U + 17*80}
v_add_u32 v40, s30, v40
s_mov_b32 s36, 0x{f2u(1.0/512):08x}
s_mov_b32 s38, 0x{f2u(1e-5):08x}""")
    la = lbl("cvw"); lb = lbl("cvw")
    A(f"s_cmp_lg_u32 s40, 0\ns_cbranch_scc1 {la}\ns_waitcnt vmcnt(16)\ns_branch {lb}\n{la}:\ns_waitcnt vmcnt(0)\n{lb}:")
    mstamp()
    S, Q = 20, 28
    for i in range(8):
        A(f"v_mul_f32 v{S+i}, s36, v{S+i}")
        A(f"v_mul_f32 v{Q+i}, s36, v{Q+i}")
    for i in range(8): A(f"v_fma_f32 v{Q+i}, -v{S+i}, v{S+i}, v{Q+i}")
    for i in range(8): A(f"v_max_f32 v{Q+i}, 0, v{Q+i}")
    for i in range(0, 8, 2):
        rnd_pair(S+i, S+1+i, S+i, S+1+i, 44+i//2)
        rnd_pair(Q+i, Q+1+i, Q+i, Q+1+i, 48+i//2)
    for i in range(8): A(f"v_add_f32 v{Q+i}, s38, v{Q+i}")
    for i in range(0, 8, 2): rnd_pair(Q+i, Q+1+i, Q+i, Q+1+i, 44+i//2)
    for i in range(8): A(f"v_sqrt_f32 v{Q+i}, v{Q+i}")
    for i in range(0, 8, 2): rnd_pair(Q+i, Q+1+i, Q+i, Q+1+i, 44+i//2)
    for i in range(8): A(f"v_rcp_f32 v{Q+i}, v{Q+i}")
    A(f"ds_write_b128 v10, v[12:15] offset:{CV_X - CV_U - 32*80}")
    A(f"ds_write_b128 v10, v[16:19] offset:{CV_X + CV_XCH - CV_U - 32*80}")
    for ch in range(2):
        src = 12 + 4*ch
        for k in range(4):
            A(f"v_lshlrev_b32 v{44+2*k}, 16, v{src+k}")
            A(f"v_and_b32 v{45+2*k}, 0xffff0000, v{src+k}")
        for k in range(8): A(f"v_sub_f32 v{44+k}, v{44+k}, v{S+k}")
        for k in range(4): rnd_pair(44+2*k, 45+2*k, 44+2*k, 45+2*k, 52+k)
        for k in range(8): A(f"v_mul_f32 v{44+k}, v{44+k}, v{Q+k}")
        for k in range(4): A(f"v_cvt_pk_bf16_f32 v{56+4*ch+k}, v{44+2*k}, v{45+2*k}")
        A(f"ds_write_b128 v10, v[{56+4*ch}:{59+4*ch}] offset:{ch*CV_UCH}")
    mstamp()
    A("s_waitcnt vmcnt(0) lgkmcnt(0)\ns_barrier")
    mstamp()
    def rd(it, which):
        kk, h = it // 2, it % 2
        s0 = 2*kk - h
        base = 64 + 16*(it % 3)
        if which == 0: A(f"ds_read_b128 v[{base}:{base+3}], v11 offset:{32*(94-s0)}")
        if which == 1: A(f"ds_read_b128 v[{base+4}:{base+7}], v40 offset:{(15-kk)*80 + 32*h}")
        if which == 2: A(f"ds_read_b128 v[{base+8}:{base+11}], v11 offset:{32*(94-s0-64)}")
        if which == 3: A(f"ds_read_b128 v[{base+12}:{base+15}], v40 offset:{(15-kk+32)*80 + 32*h}")
    for it in range(2):
        for w in range(4): rd(it, w)
    A("s_mov_b32 s19, s49")
    for it in range(32):
        b = 64 + 16*(it % 3)
        A(f"s_waitcnt lgkmcnt({4 if it < 31 else 0})")
        c0 = "0" if it == 0 else "v[112:127]"; c1 = "0" if it == 0 else "v[128:143]"
        A(f"v_mfma_f32_32x32x16_bf16 v[112:127], v[{b}:{b+3}], v[{b+4}:{b+7}], {c0}")
        if it + 2 < 32: rd(it+2, 0); rd(it+2, 1)
        A(f"v_mfma_f32_32x32x16_bf16 v[128:143], v[{b+8}:{b+11}], v[{b+4}:{b+7}], {c1}")
        if it + 2 < 32: rd(it+2, 2); rd(it+2, 3)
        A(f"v_mfma_f32_32x32x16_bf16 v[128:143], v[{b}:{b+3}], v[{b+12}:{b+15}], v[128:143]")
        A(f"buffer_load_dwordx4 a[{4*it}:{4*it+3}], v8, s[8:11], s19 offen offset:{1024*(it%4)}")
        if it % 4 == 3 and it < 31: A("s_add_u32 s19, s19, 4096")
    mstamp()
    A(f"""s_lshl_b32 s30, s33, 12
s_add_u32 s30, s30, {CV_EX}
v_add_u32 v44, s30, v8
s_xor_b32 s31, s33, 1
s_lshl_b32 s31, s31, 12
s_add_u32 s31, s31, {CV_EX}
v_add_u32 v45, s31, v8
s_mul_i32 s30, s25, {CV_UCH}
s_mul_i32 s31, s28, {32*80}
s_add_u32 s30, s30, s31
s_add_u32 s30, s30, {CV_U + 32*80}
v_add_u32 v46, s30, v41
s_mul_i32 s30, s25, {CV_XCH}
s_add_u32 s30, s30, s31
s_add_u32 s30, s30, {CV_X}
v_add_u32 v47, s30, v41""")
    for q in range(4):
        A(f"ds_read_b64 v[{48+2*q}:{49+2*q}], v46 offset:{16*q}")
        A(f"ds_read_b64 v[{56+2*q}:{57+2*q}], v47 offset:{16*q}")
    k0 = lbl("ck0"); k1 = lbl("ck1")
    A(f"s_cmp_eq_u32 s28, 0\ns_cbranch_scc1 {k0}")
    for q in range(4): A(f"ds_write_b128 v44, v[{112+4*q}:{115+4*q}] offset:{1024*q}")
    for i in range(0, 16, 2): A(f"v_mov_b64 v[{112+i}:{113+i}], v[{128+i}:{129+i}]")
    A(f"s_branch {k1}\n{k0}:")
    for q in range(4): A(f"ds_write_b128 v44, v[{128+4*q}:{131+4*q}] offset:{1024*q}")
    A(f"{k1}:")
    A(f"""v_and_b32 v9, 15, v1
v_lshrrev_b32 v10, 2, v9
v_lshlrev_b32 v10, 17, v10
v_and_b32 v9, 3, v9
v_lshl_add_u32 v10, v9, 6, v10
v_lshl_add_u32 v10, v43, 4, v10
v_bfe_u32 v9, v1, 4, 1
v_lshl_add_u32 v10, v9, 5, v10
s_lshl_b32 s30, s25, 8
s_lshl_b32 s31, s28, 20
s_add_u32 s22, s22, s30
s_add_u32 s22, s22, s31
s_add_u32 s23, s22, {4*131072}
s_waitcnt lgkmcnt(4)""")
    for k in range(8):
        A(f"v_lshlrev_b32 v{64+2*k}, 16, v{48+k}")
        A(f"v_and_b32 v{65+2*k}, 0xffff0000, v{48+k}")
    for k in range(16): A(f"v_mul_f32 v{64+k}, s34, v{64+k}")
    A("s_waitcnt lgkmcnt(0)\ns_barrier")
    for q in range(4): A(f"ds_read_b128 v[{96+4*q}:{99+4*q}], v45 offset:{1024*q}")
    for k in range(8): rnd_pair(64+2*k, 65+2*k, 64+2*k, 65+2*k, 48+k)
    for k in range(8):
        A(f"v_lshlrev_b32 v{80+2*k}, 16, v{56+k}")
        A(f"v_and_b32 v{81+2*k}, 0xffff0000, v{56+k}")
    A("s_waitcnt lgkmcnt(0)")
    for k in range(16): A(f"v_add_f32 v{112+k}, v{112+k}, v{96+k}")
    for k in range(8): rnd_pair(112+2*k, 113+2*k, 112+2*k, 113+2*k, 48+k)
    for k in range(16): A(f"v_add_f32 v{112+k}, v{112+k}, v{64+k}")
    for k in range(8): rnd_pair(112+2*k, 113+2*k, 112+2*k, 113+2*k, 48+k)
    for k in range(16): A(f"v_add_f32 v{112+k}, v{112+k}, v{80+k}")
    for k in range(8): A(f"v_cvt_pk_bf16_f32 v{48+k}, v{112+2*k}, v{113+2*k}")
    for p in range(2):
        A(f"v_permlane32_swap_b32 v{48+4*p}, v{50+4*p}")
        A(f"v_permlane32_swap_b32 v{49+4*p}, v{51+4*p}")
    for k in range(4): A(f"v_permlane16_swap_b32 v{48+k}, v{52+k}")
    A("buffer_store_dwordx4 v[48:51], v10, s[8:11], s22 offen sc1")
    A("buffer_store_dwordx4 v[52:55], v10, s[8:11], s23 offen sc1")
    mstamp()

def stats_role():
    A(f"""s_sub_u32 s18, s17, 28
s_lshl_b32 s19, s16, 2
s_add_u32 s18, s18, s19
s_lshr_b32 s19, s18, 1
s_lshl_b32 s19, s19, 17
s_add_u32 s20, s43, s19
s_and_b32 s19, s18, 1
s_lshl_b32 s19, s19, 7
s_add_u32 s20, s20, s19
s_lshl_b32 s21, s18, 9
s_add_u32 s21, s21, s45
v_lshrrev_b32 v9, 3, v0
v_lshlrev_b32 v9, 8, v9
v_and_b32 v10, 7, v0
v_lshl_add_u32 v9, v10, 4, v9""")
    for i in range(16):
        A(f"buffer_load_dwordx4 v[{32+4*i}:{35+4*i}], v9, s[8:11], s20 offen sc1")
        if i < 15: A("s_add_u32 s20, s20, 8192")
    for i in range(16):
        A(f"s_waitcnt vmcnt({15-i})")
        for k in range(4):
            A(f"v_lshlrev_b32 v{112+2*k}, 16, v{32+4*i+k}")
            A(f"v_and_b32 v{113+2*k}, 0xffff0000, v{32+4*i+k}")
        for k in range(0, 8, 2):
            if i == 0:
                A(f"v_mov_b64 v[{96+k}:{97+k}], v[{112+k}:{113+k}]")
                A(f"v_pk_mul_f32 v[{104+k}:{105+k}], v[{112+k}:{113+k}], v[{112+k}:{113+k}]")
            else:
                A(f"v_pk_add_f32 v[{96+k}:{97+k}], v[{96+k}:{97+k}], v[{112+k}:{113+k}]")
                A(f"v_pk_fma_f32 v[{104+k}:{105+k}], v[{112+k}:{113+k}], v[{112+k}:{113+k}], v[{104+k}:{105+k}]")
    for k in range(8): A(f"v_permlane32_swap_b32 v{96+k}, v{104+k}")
    for k in range(8): A(f"v_add_f32 v{96+k}, v{96+k}, v{104+k}")
    for k in range(4): A(f"v_permlane16_swap_b32 v{96+k}, v{100+k}")
    for k in range(4): A(f"v_add_f32 v{96+k}, v{96+k}, v{100+k}")
    for k in range(4): A(f"v_add_f32_dpp v{96+k}, v{96+k}, v{96+k} row_ror:8 row_mask:0xf bank_mask:0xf")
    A(f"""v_lshrrev_b32 v11, 5, v1
v_lshlrev_b32 v11, 8, v11
v_lshl_add_u32 v11, v10, 5, v11
v_bfe_u32 v12, v1, 4, 1
v_lshl_add_u32 v11, v12, 4, v11
s_lshl_b32 s18, s33, 9
v_add_u32 v11, s18, v11
ds_write_b128 v11, v[96:99]
v_lshlrev_b32 v12, 2, v1
s_waitcnt lgkmcnt(0)
s_barrier""")
    e = lbl("ste")
    A(f"s_cmp_lg_u32 s33, 0\ns_cbranch_scc1 {e}")
    for w in range(4):
        A(f"ds_read_b32 v{16+w}, v12 offset:{512*w}\nds_read_b32 v{20+w}, v12 offset:{512*w+256}")
    A(f"""s_waitcnt lgkmcnt(0)
v_add_f32 v16, v16, v17
v_add_f32 v18, v18, v19
v_add_f32 v20, v20, v21
v_add_f32 v22, v22, v23
v_add_f32 v16, v16, v18
v_add_f32 v17, v20, v22
v_mul_f32 v16, 0x{f2u(1.0/512):08x}, v16
v_mul_f32 v17, 0x{f2u(1.0/512):08x}, v17
v_fma_f32 v17, -v16, v16, v17
v_max_f32 v17, 0, v17""")
    rnd_pair(16, 17, 16, 17, 20)
    A(f"""v_add_f32 v17, 0x{f2u(1e-5):08x}, v17
v_cvt_pk_bf16_f32 v17, v17, v17
v_lshlrev_b32 v17, 16, v17
v_sqrt_f32 v17, v17
v_cvt_pk_bf16_f32 v17, v17, v17
v_lshlrev_b32 v17, 16, v17
v_rcp_f32 v22, v17
v_lshlrev_b32 v12, 3, v1
v_mul_f32 v23, v22, v16
v_or_b32 v22, 1, v22
buffer_store_dwordx2 v[22:23], v12, s[8:11], s21 offen sc1
{e}:""")

def g1_phase():
    A(f"""v_lshrrev_b32 v4, 4, v1
v_and_b32 v5, 15, v1
v_lshlrev_b32 v9, 2, v4
v_xor_b32 v9, v9, v5
v_lshlrev_b32 v9, 4, v9
v_lshl_add_u32 v9, v4, 8, v9
s_lshl_b32 s18, s50, 17
s_add_u32 s20, s43, s18
s_lshl_b32 s21, s33, 12
s_add_u32 s20, s20, s21""")
    def dma_setup(st): A(f"s_add_u32 m0, s21, {st*16384}\ns_add_u32 s23, s20, {st*16384}")
    def dma(j): A(f"buffer_load_dwordx4 v9, s[8:11], s23 offen offset:{1024*j} sc1 lds")
    PRE = 3
    for st in range(PRE):
        dma_setup(st)
        for j in range(4): dma(j)
    A(f"""v_lshrrev_b32 v6, 2, v5
v_and_b32 v7, 3, v1
v_lshrrev_b32 v14, 1, v4
v_lshl_add_u32 v14, v14, 3, v6
v_lshlrev_b32 v14, 8, v14
v_and_b32 v15, 1, v4
v_lshl_add_u32 v14, v15, 5, v14
v_lshl_add_u32 v14, v7, 3, v14""")
    for j in range(4):
        A(f"v_xor_b32 v15, {j}, v6\nv_lshl_add_u32 v{10+j}, v15, 6, v14")
    A(f"""v_lshrrev_b32 v16, 5, v1
v_lshlrev_b32 v16, 4, v16
v_and_b32 v26, 31, v1
v_lshlrev_b32 v26, 3, v26
s_lshl_b32 s24, s51, 7
s_add_u32 s24, s24, {CS}
s_add_u32 s29, s24, {B1F - CS}
s_lshl_b32 s30, s50, 10
s_add_u32 s30, s30, s45""")
    def rd(ks, j):
        for hh in range(2):
            off = (ks % 16)*4096 + hh*1024
            A(f"ds_read_b64_tr_b16 v[{64+4*j+2*hh}:{65+4*j+2*hh}], v{10+j} offset:{off}")
    A(f"s_waitcnt vmcnt({4*(PRE-1)})\ns_barrier")
    mstamp()
    for j in range(4): rd(0, j)
    issued = 4*PRE
    extra = 0
    for ks in range(32):
        nxt = ks + 1
        if nxt < 32 and nxt % 4 == 0:
            st = nxt // 4
            A(f"s_waitcnt vmcnt({issued - 4*(st+1) + extra})\ns_barrier")
        for j in range(4):
            a0 = 96 + 16*j
            c = "0" if ks == 0 else f"v[{a0}:{a0+15}]"
            A(f"s_waitcnt lgkmcnt({6 if nxt < 32 or j == 0 else 6-2*j})")
            A(f"v_mfma_f32_32x32x16_bf16 v[{a0}:{a0+15}], a[{4*ks}:{4*ks+3}], v[{64+4*j}:{67+4*j}], {c}")
            if nxt < 32:
                if nxt == 16: A(f"v_add_u32 v{10+j}, 0x10000, v{10+j}")
                rd(nxt, j)
            if j == 1:
                st2 = ks // 4 + PRE
                if st2 < 8:
                    if ks % 4 == 0: dma_setup(st2)
                    dma(ks % 4); issued += 1
                elif ks in (20, 21, 22, 23):
                    q = ks - 20
                    A(f"buffer_load_dwordx4 v[{32+4*q}:{35+4*q}], v16, s[8:11], s24 offen offset:{32*q}")
                    A(f"buffer_load_dwordx4 v[{48+4*q}:{51+4*q}], v16, s[8:11], s29 offen offset:{32*q}")
                    extra += 2
                elif ks == 28:
                    for jj in range(4):
                        A(f"buffer_load_dwordx2 v[{18+2*jj}:{19+2*jj}], v26, s[8:11], s30 offen offset:{256*jj} sc1")
    mstamp()
    A(f"""s_lshl_b32 s23, s51, 11
s_add_u32 s23, s23, s46
s_mul_i32 s24, s50, {4*112*1024}
s_add_u32 s23, s23, s24
s_mov_b32 s18, {SPIN_MAX}""")
    l = lbl("rs"); d = lbl("rsd")
    A(f"""{l}:
s_waitcnt vmcnt(0)
v_min_u32 v14, v18, v20
v_min_u32 v15, v22, v24
v_min_u32 v14, v14, v15
v_cmp_ne_u32 vcc, 0, v14
s_cmp_eq_u64 vcc, -1
s_cbranch_scc1 {d}""")
    for jj in range(4):
        A(f"buffer_load_dwordx2 v[{18+2*jj}:{19+2*jj}], v26, s[8:11], s30 offen offset:{256*jj} sc1")
    A(f"""s_sub_u32 s18, s18, 1
s_cmp_lg_u32 s18, 0
s_cbranch_scc1 {l}
{d}:""")
    mstamp()
    for j in range(4):
        a0 = 96 + 16*j
        rr = 18 + 2*j
        T = 64
        for k in range(8):
            A(f"v_pk_fma_f32 v[{T+2*k}:{T+2*k+1}], v[{32+2*k}:{33+2*k}], v[{rr}:{rr+1}], v[{48+2*k}:{49+2*k}] op_sel:[0,1,0] op_sel_hi:[1,1,1] neg_lo:[0,1,0] neg_hi:[0,1,0]")
        for k in range(8):
            A(f"v_pk_fma_f32 v[{a0+2*k}:{a0+2*k+1}], v[{a0+2*k}:{a0+2*k+1}], v[{rr}:{rr+1}], v[{T+2*k}:{T+2*k+1}] op_sel_hi:[1,0,1]")
        for k in range(16): A(f"v_max_f32 v{a0+k}, 0, v{a0+k}")
        for k in range(8):
            A(f"v_pk_mul_f32 v[{a0+2*k}:{a0+2*k+1}], v[{a0+2*k}:{a0+2*k+1}], v[{a0+2*k}:{a0+2*k+1}]")
        O = 80 + 8*(j % 2)
        for k in range(8): A(f"v_cvt_pk_bf16_f32 v{O+k}, v{a0+2*k}, v{a0+2*k+1}")
        A(f"buffer_store_dwordx4 v[{O}:{O+3}], v8, s[8:11], s23 offen sc1")
        A(f"buffer_store_dwordx4 v[{O+4}:{O+7}], v8, s[8:11], s23 offen offset:1024 sc1")
        if j < 3: A(f"s_add_u32 s23, s23, {112*1024}")
    mstamp()

def g2_pre():
    A(f"""v_lshrrev_b32 v9, 3, v1
v_lshlrev_b32 v9, 8, v9
v_and_b32 v7, 7, v1
v_lshl_add_u32 v9, v7, 4, v9
v_lshrrev_b32 v17, 5, v1
v_lshlrev_b32 v18, 4, v17
s_lshl_b32 s18, s53, 14
s_lshr_b32 s19, s52, 1
s_lshl_b32 s19, s19, 17
s_add_u32 s18, s18, s19
s_and_b32 s19, s52, 1
s_lshl_b32 s19, s19, 7
s_add_u32 s18, s18, s19
s_lshl_b32 s19, s33, 12
s_add_u32 s32, s18, s19
s_add_u32 s20, s43, s32
s_add_u32 s21, s20, 0x800
s_lshl_b32 s22, s33, 11
s_lshl_b32 s23, s53, 8
s_lshl_b32 s18, s25, 7
s_add_u32 s23, s23, s18
s_add_u32 s23, s23, {B2F}
s_add_u32 m0, s22, {G2_RES}
s_mul_i32 s18, s33, {28*1024}
buffer_load_dwordx4 v9, s[8:11], s20 offen sc1 lds
s_add_u32 m0, s22, {G2_RES + 1024}
s_mul_i32 s24, s52, {2*112*1024}
buffer_load_dwordx4 v9, s[8:11], s21 offen sc1 lds
s_add_u32 s24, s24, s18
s_add_u32 s24, s24, s46
s_add_u32 s29, s24, {112*1024}""")
    for q in range(4):
        A(f"buffer_load_dwordx4 v[{20+4*q}:{23+4*q}], v18, s[8:11], s23 offen offset:{32*q}")

def g2_poll():
    l = lbl("gp"); d = lbl("gpd")
    A(f"""v_min_u32 v4, 3, v1
v_lshlrev_b32 v4, 2, v4
s_mul_i32 s18, s33, 7
s_lshr_b32 s18, s18, 1
s_lshl_b32 s18, s18, 2
s_lshr_b32 s19, s52, 1
s_lshl_b32 s19, s19, 6
s_add_u32 s19, s19, s18
s_add_u32 s19, s19, s47
s_mov_b32 s18, {SPIN_MAX}
{l}:
buffer_load_dword v5, v4, s[8:11], s19 offen sc1
s_waitcnt vmcnt(0)
v_cmp_ne_u32 vcc, 0, v5
s_cmp_eq_u64 vcc, -1
s_cbranch_scc1 {d}
s_sub_u32 s18, s18, 1
s_cmp_lg_u32 s18, 0
s_cbranch_scc1 {l}
{d}:""")

def g2_phase():
    RING = 16
    def loads(ks):
        slot = ks % RING
        for t, sreg in enumerate((24, 29)):
            r = 8*slot + 4*t
            A(f"buffer_load_dwordx4 a[{r}:{r+3}], v8, s[8:11], s{sreg} offen offset:{1024*(ks%4)} sc1")
        if ks % 4 == 3:
            for sreg in (24, 29): A(f"s_add_u32 s{sreg}, s{sreg}, 4096")
    for ks in range(RING): loads(ks)
    for ks in range(28):
        r = 8*(ks % RING)
        later = min(RING - 1, 27 - ks) * 2
        def mf(dq, lq):
            acc = 64 + 16*(2*dq+lq)
            c = "0" if ks == 0 else f"v[{acc}:{acc+15}]"
            A(f"v_mfma_f32_32x32x16_bf16 v[{acc}:{acc+15}], {w2reg(2*ks+dq)}, a[{r+4*lq}:{r+4*lq+3}], {c}")
        A(f"s_waitcnt vmcnt({later + 1})")
        mf(0, 0); mf(1, 0)
        A(f"s_waitcnt vmcnt({later})")
        mf(0, 1); mf(1, 1)
        if ks == 0: mstamp()
        if ks + RING < 28: loads(ks + RING)
    mstamp()
    A(f"""v_lshrrev_b32 v4, 4, v1
v_and_b32 v5, 15, v1
v_lshrrev_b32 v6, 2, v5
v_and_b32 v7, 3, v1
v_lshl_add_u32 v11, v17, 2, v6
v_lshlrev_b32 v11, 7, v11
v_and_b32 v12, 1, v4
v_lshl_add_u32 v11, v12, 5, v11
v_lshl_add_u32 v11, v7, 3, v11
s_lshl_b32 s18, s25, 12
s_lshl_b32 s19, s28, 6
s_add_u32 s18, s18, s19
v_add_u32 v11, s18, v11
v_and_b32 v13, 31, v1
v_mul_u32_u24 v12, {G2_OSTR}, v13
v_lshl_add_u32 v12, v17, 3, v12
s_mul_i32 s18, s28, {32*G2_OSTR}
s_lshl_b32 s19, s25, 6
s_add_u32 s18, s18, s19
v_add_u32 v12, s18, v12""")
    for q in range(4):
        sk = lbl("g2s"); nx = lbl("g2n")
        A(f"""s_cmp_eq_u32 s33, {q}
s_cbranch_scc1 {sk}
s_sub_u32 s18, s33, {q+1}
s_and_b32 s18, s18, 3
s_lshl_b32 s18, s18, 12
v_add_u32 v10, s18, v8""")
        for k in range(4):
            A(f"ds_write_b128 v10, v[{64+16*q+4*k}:{67+16*q+4*k}] offset:{G2_RED + q*12288 + 1024*k}")
        A(f"s_branch {nx}\n{sk}:")
        for k in range(0, 16, 2): A(f"v_pk_add_f32 v[{48+k}:{49+k}], v[{64+16*q+k}:{65+16*q+k}], v[{20+k}:{21+k}]")
        A(f"{nx}:")
    A(f"""s_mul_i32 s18, s33, 12288
v_add_u32 v10, s18, v8""")
    A("s_waitcnt lgkmcnt(0)\ns_barrier")
    for q in range(4):
        A(f"ds_read_b64_tr_b16 v[{40+2*q}:{41+2*q}], v11 offset:{G2_RES + 1024*q}")
    for p in range(3):
        for k in range(4):
            A(f"ds_read_b128 v[{64+16*p+4*k}:{67+16*p+4*k}], v10 offset:{G2_RED + 4096*p + 1024*k}")
    A("s_waitcnt lgkmcnt(12)")
    for k in range(8):
        A(f"v_lshlrev_b32 v{112+2*k}, 16, v{40+k}")
        A(f"v_and_b32 v{113+2*k}, 0xffff0000, v{40+k}")
    for k in range(8):
        A(f"v_pk_add_f32 v[{48+2*k}:{49+2*k}], v[{48+2*k}:{49+2*k}], v[{112+2*k}:{113+2*k}]")
    for p in range(3):
        A(f"s_waitcnt lgkmcnt({8-4*p})")
        for k in range(8):
            A(f"v_pk_add_f32 v[{48+2*k}:{49+2*k}], v[{48+2*k}:{49+2*k}], v[{64+16*p+2*k}:{65+16*p+2*k}]")
    for k in range(8): A(f"v_cvt_pk_bf16_f32 v{40+k}, v{48+2*k}, v{49+2*k}")
    for q in range(4): A(f"ds_write_b64 v12, v[{40+2*q}:{41+2*q}] offset:{G2_OUT + 16*q}")
    mstamp()
    A("s_cmp_eq_u32 s40, 1\ns_cbranch_scc1 L_final")
    A("v_mov_b32 v14, 0\nv_mov_b32 v15, 0")
    for k in range(8):
        A(f"v_dot2c_f32_bf16 v14, 0x{ONES_BF:08x}, v{40+k}")
        A(f"v_dot2c_f32_bf16 v15, v{40+k}, v{40+k}")
    A(f"""v_lshrrev_b32 v11, 1, v7
v_lshl_add_u32 v11, v4, 1, v11
v_lshl_add_u32 v11, v11, 3, v6
v_mul_u32_u24 v11, {G2_OSTR}, v11
v_and_b32 v12, 1, v7
v_lshl_add_u32 v11, v12, 3, v11
s_lshl_b32 s18, s33, 5
v_add_u32 v11, s18, v11
v_permlane32_swap_b32 v14, v15
v_and_b32 v12, 7, v1
v_lshlrev_b32 v12, 8, v12
v_add_f32 v14, v14, v15
v_lshrrev_b32 v16, 3, v1
v_lshl_add_u32 v12, v16, 4, v12
v_lshlrev_b32 v13, 2, v13
v_lshl_add_u32 v13, v17, 13, v13
s_lshl_b32 s18, s52, 8
s_lshl_b32 s19, s28, 7
s_add_u32 s18, s18, s19
s_add_u32 s18, s18, {ST2}
buffer_atomic_add_f32 v14, v13, s[8:11], s18 offen
s_add_u32 s18, s32, {XT2}
s_waitcnt lgkmcnt(0)
s_barrier""")
    for i in range(2):
        for hh in range(2):
            A(f"ds_read_b64_tr_b16 v[{48+4*i+2*hh}:{49+4*i+2*hh}], v11 offset:{G2_OUT + 4*hh*G2_OSTR + 16*i}")
    A("""s_waitcnt lgkmcnt(2)
buffer_store_dwordx4 v[48:51], v12, s[8:11], s18 offen sc1
s_waitcnt lgkmcnt(0)
buffer_store_dwordx4 v[52:55], v12, s[8:11], s18 offen offset:2048 sc1""")

def gen_mega():
    entry("mega_kernel")
    A(f"""s_cmp_ge_u32 s2, 256
s_cbranch_scc1 L_mega_end
s_load_dwordx2 s[4:5], s[0:1], 128
s_load_dwordx2 s[6:7], s[0:1], 64
s_load_dwordx2 s[30:31], s[0:1], 112
v_and_b32 v1, 63, v0
v_lshrrev_b32 v2, 6, v0
v_lshlrev_b32 v8, 4, v1
s_and_b32 s16, s2, 7
v_readfirstlane_b32 s33, v2
s_lshr_b32 s17, s2, 3
s_mov_b32 s40, 0
s_mov_b32 s41, {XT0}
s_mov_b32 s42, {ST0}
s_mov_b32 s43, {XT1}
s_mov_b32 s44, {FC0}
s_mov_b32 s45, {RS0}
s_mov_b32 s46, {HF}
s_mov_b32 s47, {FG0}
s_lshr_b32 s25, s33, 1
s_and_b32 s28, s33, 1
s_lshl_b32 s3, s2, 2
s_and_b32 s18, s17, 1
s_lshl_b32 s50, s16, 1
s_add_u32 s50, s50, s18
s_lshr_b32 s51, s17, 1
s_min_u32 s51, s51, 13
s_lshl_b32 s51, s51, 2
s_add_u32 s51, s51, s33
s_lshl_b32 s49, s51, 15
s_add_u32 s49, s49, {W1F}
s_and_b32 s18, s17, 3
s_lshl_b32 s52, s16, 2
s_add_u32 s52, s52, s18
s_lshr_b32 s53, s17, 2
s_mul_i32 s18, s33, {28*1024}
s_mul_i32 s26, s53, {2*112*1024}
s_add_u32 s26, s26, s18
s_add_u32 s26, s26, {W2F}
s_add_u32 s27, s26, {112*1024}
s_waitcnt lgkmcnt(0)
s_load_dword s48, s[6:7], s3""")
    srd(8, 4, WS_USED); srd(12, 30, 0x200000)
    A(f"""s_waitcnt lgkmcnt(0)
s_lshl_b32 s34, s48, 16
s_and_b32 s35, s48, 0xffff0000
s_cmp_eq_u32 s25, 0
s_cselect_b32 s34, s34, s35
L_layer:""")
    MST[0] = 0
    mstamp()
    conv_phase()
    A("s_lshl_b32 s18, s2, 2\ns_add_u32 s29, s44, s18")
    publish(29)
    mstamp()
    l = lbl("w2a")
    A(f"s_cmp_lg_u32 s40, 0\ns_cbranch_scc1 {l}")
    w2_prefetch(0, 14)
    A(f"{l}:")
    poll_all(44)
    mstamp()
    A("s_cmp_ge_u32 s17, 28\ns_cbranch_scc1 L_stats")
    n0 = MST[0]
    g1_phase()
    A(f"""s_lshl_b32 s18, s50, 6
s_lshr_b32 s19, s51, 2
s_lshl_b32 s19, s19, 2
s_add_u32 s18, s18, s19
s_add_u32 s29, s47, s18""")
    publish(29)
    A("s_branch L_g2")
    A("L_stats:")
    stats_role()
    if DIAG:
        for i in range(n0, MST[0]): A(f"s_mov_b32 s{56+i}, 0")
    A("s_barrier")
    A("L_g2:")
    mstamp()
    g2_pre()
    l = lbl("w2b")
    A(f"s_cmp_lg_u32 s40, 0\ns_cbranch_scc1 {l}")
    w2_prefetch(14, 28)
    A(f"{l}:")
    g2_poll()
    mstamp()
    g2_phase()
    A(f"s_lshl_b32 s18, s2, 2\ns_add_u32 s29, s18, {FX}")
    publish(29)
    mstamp()
    k_dma()
    A(f"s_mov_b32 s29, {FX}")
    poll_all(29)
    mstamp()
    mdump()
    A(f"""s_mov_b32 s40, 1
s_mov_b32 s41, {XT2}
s_mov_b32 s42, {ST2}
s_mov_b32 s43, {XT3}
s_mov_b32 s44, {FC1}
s_mov_b32 s45, {RS1}
s_mov_b32 s46, {HF2}
s_mov_b32 s47, {FG1}
s_branch L_layer""")
    A(f"""L_final:
v_lshrrev_b32 v11, 3, v0
v_and_b32 v13, 7, v0
v_lshlrev_b32 v12, 10, v11
v_lshl_add_u32 v12, v13, 4, v12
v_mul_u32_u24 v11, {G2_OSTR}, v11
v_lshl_add_u32 v11, v13, 4, v11
s_lshl_b32 s18, s52, 16
s_lshl_b32 s19, s53, 7
s_add_u32 s18, s18, s19
s_add_u32 s19, s18, 0x8000
s_waitcnt lgkmcnt(0)
s_barrier
ds_read_b128 v[48:51], v11 offset:{G2_OUT}
ds_read_b128 v[52:55], v11 offset:{G2_OUT + 32*G2_OSTR}
s_waitcnt lgkmcnt(1)
buffer_store_dwordx4 v[48:51], v12, s[12:15], s18 offen
s_waitcnt lgkmcnt(0)
buffer_store_dwordx4 v[52:55], v12, s[12:15], s19 offen""")
    if DIAG:
        MST[0] -= 2
        A("s_waitcnt vmcnt(0)"); mstamp(); mstamp(); mdump()
    A("L_mega_end:\ns_endpgm")

def main(out):
    hdr = open("cdna_kernels/" + NAME + ".s.ref").read().split("; Override launch")[0]
    launches = [("prep_kernel", 504, PREP_LDS), ("mega_kernel", 256, MEGA_LDS)]
    for k, g, lds in launches:
        hdr += f"; @launch kernel={k} grid=({g},1,1) block=(256,1,1) lds={lds}\n"
    A.raw('.amdgcn_target "amdgcn-amd-amdhsa--gfx950"')
    A.raw(".text")
    gen_prep(); gen_mega()
    body = A.finish()
    desc = '.section .rodata,"a"\n'
    SG = 100 if DIAG else 56
    desc += kdesc("prep_kernel", 216, SG, 216)
    desc += kdesc("mega_kernel", 512, SG, 256)
    open(out, "w").write(hdr + body + desc)

if __name__ == "__main__":
    main(sys.argv[1] if len(sys.argv) > 1 else "cdna_kernels/" + NAME + ".s")
```
